```python
import torch

def _softmax(x, axis=-1):
    return torch.softmax(x, dim=axis)

def _gelu(x):
    return torch.nn.functional.gelu(x, approximate='tanh')

def _silu(x):
    return torch.nn.functional.silu(x)

def _sigmoid(x):
    return torch.sigmoid(x)

def _layernorm(x, axis=-1, eps=1e-05):
    m = x.mean(dim=axis, keepdim=True)
    v = x.var(dim=axis, keepdim=True, unbiased=False)
    return (x - m) / torch.sqrt(v + eps)

def _scatter_add(tgt, idx, src, axis=0):
    return tgt.clone().index_add_(axis, idx, src)

def _segment_sum(src, seg, n):
    out = torch.zeros((n,) + src.shape[1:], dtype=src.dtype)
    return out.index_add_(0, seg, src)

def _pad(x, pw):
    flat = tuple((v for pair in reversed(pw) for v in pair))
    return torch.nn.functional.pad(x, flat)
kernel_name = 'standalone__autoregressive_conv_wavernn__speech'

def setup_inputs():

    _w = lambda a: (lambda t: t.to(torch.bfloat16) if t.is_floating_point() else t)(torch.as_tensor(a))
    B, T, D, K = (2, 4000, 256, 3)
    return {'x': _w((lambda *s: torch.randn(*s, dtype=torch.bfloat16) * 0.1)(B, T, D)), 'w': _w((lambda *s: torch.randn(*s, dtype=torch.bfloat16) * 0.1)(K, D, 2 * D))}

def reference(x, w):
    B, T, D = x.shape
    K = w.shape[0]
    dil = 2
    pad = (K - 1) * dil
    xp = _pad(x, ((0, 0), (pad, 0), (0, 0)))
    h = torch.einsum('btd,de->bte', xp[:, 0:T, :], w[0])
    for i in range(1, K):
        h = h + torch.einsum('btd,de->bte', xp[:, i * dil:i * dil + T, :], w[i])
    f, g = (h[..., :D].clone(), h[..., D:].clone())
    return torch.tanh(f) * _sigmoid(g)
```

```python
KN = "standalone__autoregressive_conv_wavernn__speech_kernel"
HDR_COMMENT = """; Kernarg layout for this problem (40 bytes, ptrs only, base s[0:1]):
"""
class Asm:
    def __init__(self, grid, block, lds, vgpr=256, accum=None, sgpr=102):
        self.lines = []
        self.grid, self.block, self.lds, self.vgpr = grid, block, lds, vgpr
        self.accum = accum if accum is not None else min(256, (vgpr + 3) // 4 * 4)
        self.sgpr = sgpr
        self.nstamps = 0
        self.stamp_base = 36
    def __call__(self, s):
        for l in s.strip("\n").split("\n"):
            l = l.strip()
            if not l: continue
            if l.endswith(":") or l.startswith("."):
                self.lines.append(l)
            else:
                self.lines.append("    " + l)
    def stamp(self, i=None):
        if i is None: i = self.nstamps
        self.nstamps = max(self.nstamps, i + 1)
        b = self.stamp_base + 4 * i
        assert b + 3 < 102
        self(f"s_memrealtime s[{b}:{b+1}]\ns_memtime s[{b+2}:{b+3}]")
    def dump_stamps(self, kernarg="s[0:1]", wg="s2", tid="v0", tmp_s=20, va=250, nwaves=None):
        nwaves = nwaves or self.block // 64
        t = tmp_s
        self(f"""
        s_load_dwordx2 s[{t}:{t+1}], {kernarg}, 32
        v_mov_b32 v{va}, 0
        v_mov_b32 v{va+1}, 0
        s_waitcnt lgkmcnt(0)
        s_mov_b32 s{t+2}, 0x10000000
        s_mov_b32 s{t+3}, 0x20000
        """)
        for i in range(self.nstamps):
            b = self.stamp_base + 4 * i
            self(f"""
            v_writelane_b32 v{va}, s{b}, {2*i}
            v_writelane_b32 v{va}, s{b+1}, {2*i+1}
            v_writelane_b32 v{va+1}, s{b+2}, {2*i}
            v_writelane_b32 v{va+1}, s{b+3}, {2*i+1}
            """)
        self(f"""
        s_mul_i32 s{t+4}, {wg}, {nwaves*512}
        v_lshrrev_b32 v{va+2}, 6, {tid}
        v_lshlrev_b32 v{va+2}, 9, v{va+2}
        v_and_b32 v{va+3}, 63, {tid}
        v_lshl_add_u32 v{va+2}, v{va+3}, 2, v{va+2}
        buffer_store_dword v{va}, v{va+2}, s[{t}:{t+3}], s{t+4} offen
        buffer_store_dword v{va+1}, v{va+2}, s[{t}:{t+3}], s{t+4} offen offset:256
        """)
    def dump_dbg(self, idxs, base, kernarg="s[0:1]", tmp_s=20, va=250):
        t = tmp_s
        self(f"""
        s_load_dwordx2 s[{t}:{t+1}], {kernarg}, 24
        v_mov_b32 v{va}, 0
        s_waitcnt lgkmcnt(0)
        s_mov_b32 s{t+2}, 256
        s_mov_b32 s{t+3}, 0x20000
        """)
        b0 = self.stamp_base
        self(f"s_not_b32 s{t+4}, s{b0}\nv_writelane_b32 v{va}, s{t+4}, 0")
        bl = self.stamp_base + 4*idxs[-1]
        self(f"v_writelane_b32 v{va}, s{bl}, 1")
        self(f"v_writelane_b32 v{va}, s{b0}, 2")
        for k, i in enumerate(idxs):
            b = self.stamp_base + 4*i
            self(f"s_sub_u32 s{t+4}, s{b}, s{b0}\nv_writelane_b32 v{va}, s{t+4}, {base+k}")
        self(f"""
        s_sub_u32 s{t+4}, s{bl+2}, s{b0+2}
        v_writelane_b32 v{va}, s{t+4}, 15
        v_mbcnt_lo_u32_b32 v{va+1}, -1, 0
        v_mbcnt_hi_u32_b32 v{va+1}, -1, v{va+1}
        v_lshlrev_b32 v{va+1}, 2, v{va+1}
        s_mov_b64 exec, 0xffff
        buffer_atomic_umax v{va}, v{va+1}, s[{t}:{t+3}], 0 offen
        """)
    def text(self):
        out = HDR_COMMENT
        out += f"; @launch grid=({self.grid},1,1) block=({self.block},1,1) lds={self.lds}\n"
        out += getattr(self, "header", "").lstrip("\n")
        out += f""".amdgcn_target "amdgcn-amd-amdhsa--gfx950"
.text
.globl {KN}
.p2align 12
.p2align 8
.type {KN},@function
{KN}:
"""
        out += "\n".join(self.lines) + "\n"
        out += f""".section .rodata,"a"
.p2align 6
.amdhsa_kernel {KN}
  .amdhsa_next_free_vgpr {self.vgpr}
  .amdhsa_next_free_sgpr {self.sgpr}
  .amdhsa_accum_offset {self.accum}
  .amdhsa_group_segment_fixed_size 0
  .amdhsa_kernarg_size 40
  .amdhsa_user_sgpr_count 2
  .amdhsa_user_sgpr_kernarg_segment_ptr 1
  .amdhsa_system_sgpr_workgroup_id_x 1
.end_amdhsa_kernel
"""
        return out
    def write(self, path):
        open(path, "w").write(self.text())
```

```python
import sys, json, re
from asmlib import Asm
from build import build

KN = "standalone__autoregressive_conv_wavernn__speech_kernel"
PB = 2112
XP = 8*PB + 128
NC = 22
CELL = 4096
XB = NC*CELL
XBASE = [0, XP + 128, 2*XP + 128, 128]
OP = 144
OB = XB + 3*XP + 128
LDS = OB + 128*OP
ACC = 16
POOL0, POOL1 = 80, 248
SEN = 248
TRANS = ("v_exp_f32", "v_rcp_f32")

def isize(l):
    return 4 if l.split()[0] in ("s_waitcnt", "s_barrier", "s_nop", "v_mul_f32", "v_exp_f32", "v_rcp_f32", "v_sub_f32") else 8
def cost(l): return 8 if l.split()[0] in TRANS else 4

def epi_groups(j):
    F = [ACC+8*j+i for i in range(4)]; G = [f+4 for f in F]
    p2 = lambda r: f"v[{r}:{r+1}]"
    e = (0, 2)
    same = lambda ops: (ops, ops)
    return [
        ([f"v_mul_f32 v{f}, s28, v{f}" for f in F], [f"v_pk_mul_f32 {p2(F[o])}, {p2(F[o])}, s[28:29] op_sel_hi:[1,0]" for o in e]),
        ([f"v_mul_f32 v{g}, s29, v{g}" for g in G], [f"v_pk_mul_f32 {p2(G[o])}, {p2(G[o])}, s[28:29] op_sel:[0,1] op_sel_hi:[1,1]" for o in e]),
        same([f"v_exp_f32 v{f}, v{f}" for f in F]),
        same([f"v_exp_f32 v{g}, v{g}" for g in G]),
        ([f"v_fma_f32 v{f}, v{f}, s30, s30 clamp" for f in F], [f"v_pk_fma_f32 {p2(F[o])}, {p2(F[o])}, s[30:31], s[30:31] op_sel_hi:[1,0,0] clamp" for o in e]),
        ([f"v_fma_f32 v{g}, v{f}, v{g}, v{f}" for f, g in zip(F, G)], [f"v_pk_fma_f32 {p2(G[o])}, {p2(F[o])}, {p2(G[o])}, {p2(F[o])}" for o in e]),
        same([f"v_rcp_f32 v{g}, v{g}" for g in G]),
        ([f"v_sub_f32 v{f}, s31, v{f}" for f in F], [f"v_pk_add_f32 {p2(F[o])}, {p2(F[o])}, s[30:31] op_sel:[0,1] op_sel_hi:[1,1] neg_lo:[1,0] neg_hi:[1,0]" for o in e]),
        ([f"v_mul_f32 v{f}, v{f}, v{g}" for f, g in zip(F, G)], [f"v_pk_mul_f32 {p2(F[o])}, {p2(F[o])}, {p2(G[o])}" for o in e]),
        same([f"v_cvt_pk_bf16_f32 v{F[o//2]}, v{F[o]}, v{F[o+1]}" for o in e]),
        same([f"ds_write_b64 v15, {p2(F[0])} offset:{j*16*OP}"]),
    ]

def regs(tok):
    m = re.fullmatch(r"-?v\[(\d+):(\d+)\]", tok)
    if m: return set(range(int(m.group(1)), int(m.group(2))+1))
    m = re.fullmatch(r"-?v(\d+)", tok)
    return {int(m.group(1))} if m else set()

def check_hazards(C):
    L = [l for l in C if not l.startswith(("STAMP", ";"))]
    ops = [[t.strip(",") for t in l.split()[1:]] for l in L]
    states = lambda i: int(L[i].split()[1]) + 1 if L[i].startswith("s_nop") else 1
    for i, l in enumerate(L):
        op = l.split()[0]
        if op.startswith("v_mfma"): need = 8
        elif op in TRANS: need = 1
        else: continue
        D = regs(ops[i][0])
        n, j = 0, i + 1
        while n < need and j < len(L):
            o2 = L[j].split()[0]
            touched = set().union(*[regs(t) for t in ops[j]]) if ops[j] else set()
            if o2.startswith("v_mfma"):
                assert not ((regs(ops[j][1]) | regs(ops[j][2])) & D), (i, l, L[j])
                c = regs(ops[j][3]) | regs(ops[j][0])
                assert not (c & D) or (c == D and need == 8), (i, l, L[j])
            elif not (need == 1 and o2 in TRANS):
                assert not (touched & D), ("hazard", i, l, L[j], n)
            n += states(j); j += 1
    lastuse, k = {}, 0
    for i, l in enumerate(L):
        if l.startswith("v_mfma"):
            k += 1
            for r_ in regs(ops[i][1]) | regs(ops[i][2]): lastuse[r_] = k
        elif l.startswith("ds_read"):
            assert all(k - lastuse.get(r_, -9) >= 2 for r_ in regs(ops[i][0]))

def make_stream(xpos, xt_at=2, pfw=((2, 0x77),), pf3=(), xbar=((0,0),(0,1),(0,2),(0,3))):
    ws = [("w", 2*S+h, t) for S in range(8) for t in range(3) for h in range(2)]
    ins = {}
    for c in range(4):
        for i in range(4): ins.setdefault(xpos[c][i], []).append(("x", c, i))
    ins.setdefault(xt_at, []).append(("xt",))
    for at, mask in pfw: ins.setdefault(at, []).append(("pfw", mask))
    for at, mask in pf3: ins.setdefault(at, []).append(("pf3", mask))
    st = []
    for n in range(49):
        st += ins.get(n, [])
        if n < 48: st.append(ws[n])
    first_needed = max(st.index(ws[1]), st.index(("x", 0, 0)))
    bp = set(st.index(ws[n-1]) for n in range(2, 49, 2)) | set(st.index(("x",)+e) for e in xbar)
    bp.add(max(i for i, it in enumerate(st) if it[0] in ("w", "x", "xt")))
    return st, sorted(p for p in bp if p >= first_needed)

def mfma_order(nw, m):
    deferred = [(j, 7) for j in range(1, 8)] + [(j, S) for S in (6, 5, 4) for j in range(7, 0, -1)][:m]
    out, flip = [], [0]
    def unit(j, Ss):
        seq = [(S, t) for S in Ss for t in range(3)]
        ns = (0, 1) if flip[0] else (1, 0)
        flip[0] ^= 1
        return [(j, S, t, ns[0]) for S, t in seq] + [(j, S, t, ns[1]) for S, t in reversed(seq)]
    for S in range(8):
        js = [j for j in range(8) if (j, S) not in deferred]
        if S < nw or S == 7:
            for t in range(3):
                if S == 0 and t == 0: out += [(j, S, t, n ^ (j & 1)) for j in js for n in (1, 0)]
                else: out += [(j, S, t, n) for n in (1, 0) for j in js]
        else:
            for j in js: out += unit(j, [S])
    for j in range(1, 8):
        out += unit(j, sorted(S for jj, S in deferred if jj == j))
    assert len(out) == 384 and len(set(out)) == 384
    return out

HEADER = """
;
;   waves 4-7  compute : 16 channels each, 8 row tiles, v_mfma_f32_16x16x32_bf16 (A = w^T, B = x^T)
"""

def gen(name, xpos, sched, nw=1, m=7, n0=12, nb0=15, lamin=11, lamin2=4, lasw=70, rate=70, lead=10, lead0=7, look=70, safe=9,
        stamps=False, stflags="sc1", fine=0, jitter=0, verbose=False, markfirst=True,
        markq=(0, 2, 4, 6, 8, 10, 12, 13, 14, 15, 16), **skw):
    a = Asm(256, 512, LDS, vgpr=256, sgpr=102 if (stamps or jitter) else 40)
    a.header = HEADER
    stream, bpos = make_stream(xpos, **skw)
    NB = len(bpos)
    pos = {it: i for i, it in enumerate(stream)}
    wseq = [it for it in stream if it[0] == "w"]
    cell = {it: i % NC for i, it in enumerate(wseq)}
    order = mfma_order(nw, m)
    mf = [(ACC+8*j+4*n, j, ("w", S, t, n), ("x", S, j+t)) for j, S, t, n in order]
    N = len(mf)
    tile_end, first, last = {}, {}, {}
    for k, (A, j, wf, xf) in enumerate(mf):
        tile_end[j] = k
        for fr in (wf, xf):
            first.setdefault(fr, k); last[fr] = k
    witems = lambda fr: [("w", 2*fr[1], fr[2]), ("w", 2*fr[1]+1, fr[2])]
    def need_pos(fr):
        if fr[0] == "w": return max(pos[i] for i in witems(fr))
        p = pos[("x", fr[1]//2, (fr[2] % 8)//2)]
        return max(p, pos[("xt",)]) if fr[2] == 8 else p
    need_bar = {fr: min(b for b in range(NB) if bpos[b] >= need_pos(fr)) for fr in first}
    ops = []
    for fr in sorted(first, key=lambda f: (first[f], f[0])):
        ops += [(fr, 0)] if fr[0] == "x" else [(fr, 0), (fr, 1)]
    latest, taken = {}, set()
    def place(dl):
        while dl in taken: dl -= 1
        taken.add(dl); return dl
    bslot = [0]*NB
    for b in range(NB-1, -1, -1):
        mine = [o for o in ops if need_bar[o[0]] == b]
        for op in sorted(mine, key=lambda o: (-first[o[0]], -o[1])): latest[op] = place(first[op[0]] - (lead0 if first[op[0]] < 24 else lead))
        bslot[b] = place(min([latest[o] for o in mine] + ([bslot[b+1]] if b+1 < NB else [])) - 1)
    C = []
    free = list(range(POOL0, POOL1, 4))
    reg = {}
    pending = sorted(ops, key=lambda o: latest[o])
    issued = []
    st = {"done": 0, "bar": -1}
    cell_free_at, wfr_of = {}, {}
    for fr in first:
        if fr[0] == "w":
            for it in witems(fr): wfr_of.setdefault(it, []).append(fr)
    def emit_read(op, k):
        fr, h = op
        if fr not in reg: reg[fr] = free.pop(0)
        r = reg[fr]
        if fr[0] == "x":
            S, jj = fr[1], fr[2]
            C.append(f"ds_read_b128 v[{r}:{r+3}], v{2 + jj//8} offset:{XBASE[S//2] + (S%2)*64 + (7 - jj%8)*PB}")
        else:
            off = cell[witems(fr)[0]]*CELL
            base = 4 + 2*fr[3]
            if off >= 12*CELL: off -= 12*CELL; base += 1
            C.append(f"ds_read_b64_tr_b16 v[{r+2*h}:{r+2*h+1}], v{base} offset:{off+1024*h}")
        pending.remove(op); issued.append((op, k))
    def emit_wait(frs, k):
        idx = max(i for i, (o, s) in enumerate(issued) if o[0] in frs) + 1
        if idx <= st["done"]: return 0
        while idx < len(issued) and issued[idx][1] <= k - safe: idx += 1
        n = min(15, len(issued) - idx)
        C.append(f"s_waitcnt lgkmcnt({n})")
        st["done"] = len(issued) - n
        return 4
    def emit_bar(b):
        C.append("s_barrier"); st["bar"] = b
        dn = set(o for o, s in issued[:st["done"]])
        if "xdead" not in st and all((fr, 0) in dn for fr in first if fr[0] == "x" and fr[1] < 2): st["xdead"] = b
        for it, frs in wfr_of.items():
            if it not in cell_free_at and all((fr, h) in dn for fr in frs for h in (0, 1)): cell_free_at[it] = b
    for b in range(NB):
        if bslot[b] >= 0: break
        emit_bar(b)
        for op in sorted([o for o in pending if latest[o] < 0 and need_bar[o[0]] == b], key=lambda o: (first[o[0]], o[0][0], o[1])): emit_read(op, -1)
    emit_wait(mf[0][2:], -1)
    epi, seen, est = [], set(), 0
    marks = [max(0, int(N*q/16) - 1) for q in markq]
    for k, (A, j, wf, xf) in enumerate(mf):
        if k <= tile_end[0]:
            if k == 0 or order[k][1] != order[k-1][1]: C.append(f"; channels {32*order[k][1]}..{32*order[k][1]+31}")
        elif order[k][0] != order[k-1][0]: C.append(f"; remaining steps of row tile {j}, activation of finished tiles in the MFMA shadows")
        src = f"v[{A}:{A+3}]" if A in seen else "0"
        seen.add(A)
        C.append(f"v_mfma_f32_16x16x32_bf16 v[{A}:{A+3}], v[{reg[wf]}:{reg[wf]+3}], v[{reg[xf]}:{reg[xf]+3}], {src}")
        for fr in (wf, xf):
            if last[fr] == k: free.append(reg[fr])
        used = 4
        if k+1 < N:
            assert not [o for o in pending if o[0] in mf[k+1][2:]]
            used += emit_wait(mf[k+1][2:], k)
        for jj in range(8):
            if tile_end[jj] + 3 == k: epi += [[list(p), q, False] for p, q in epi_groups(jj)]
        b = st["bar"] + 1
        if b < NB and bslot[b] <= k:
            emit_bar(b); used += 8
        elif epi and epi[0][0][0].startswith("ds_write") and used <= 8:
            C.append(epi.pop(0)[0][0]); issued.append(((("o", k), 0), k)); used += 8
        elif used <= 8:
            cand = [o for o in pending if need_bar[o[0]] <= st["bar"] and (o[0] in reg or len(free) > 2) and latest[o] - k <= (look if not epi else 2)]
            if cand: emit_read(cand[0], k); used += 8
        if not epi and tile_end[0] <= k < tile_end[0] + 3 and used <= 12:
            C.append(f"s_nop {(16 - used)//4 - 1}"); used = 16
        used = max(used, 8)
        while epi and not epi[0][0][0].startswith("ds_write") and used + cost(epi[0][0][0]) <= 16:
            t = epi[0][0].pop(0); epi[0][2] = True
            C.append(t); used += cost(t)
            if not epi[0][0]: epi.pop(0)
        est += max(16, used)
        if stamps and k in marks: C.append(f"STAMP{1 + marks.index(k)}")
    rest = []
    for p, q, started in epi: rest += p if started else q
    for p, q in epi_groups(7): rest += q
    C += rest + ["s_waitcnt lgkmcnt(0)", "s_barrier"]
    if stamps: C += ["STAMP12", "STAMP13"]
    assert not pending and st["bar"] == NB-1 and tile_end[7] == N-1
    check_hazards(C)
    if verbose: print("bslot", bslot, "est", est, "rest cyc", sum(map(cost, rest)), "waits", sum(l.startswith("s_waitcnt") for l in C))

    if stamps: a.stamp(0)
    hop = "" if (jitter or fine) else """s_cmpk_ge_u32 s3, 384
    s_cbranch_scc1 L_pad"""
    a(f"""
    s_load_dwordx2 s[12:13], s[0:1], 8              ; w
    s_load_dwordx2 s[8:9], s[0:1], 0                ; x
    s_load_dwordx2 s[24:25], s[0:1], 16             ; out
    s_cmpk_ge_u32 s2, 256
    v_readfirstlane_b32 s3, v0                      ; wave * 64
    s_cbranch_scc1 L_end
    {hop}
    s_cmpk_ge_u32 s3, 256
    s_cbranch_scc1 L_cpro
    v_lshrrev_b32 v6, 3, v0
    s_and_b32 s18, s2, 0x18
    v_xor_b32 v6, v6, v0
    s_lshl_b32 s18, s18, 4                          ; n * 128 B
    v_bfi_b32 v9, 6, v6, v0
    s_and_b32 s4, s3, 0x80
    v_and_b32 v9, 7, v9
    s_lshl2_add_u32 s22, s4, s18
    v_and_b32 v5, 0xf8, v0
    s_lshl_b32 s21, s3, 4
    v_lshlrev_b32 v5, 6, v5
    s_mov_b32 s14, 786432
    v_lshl_add_u32 v5, v9, 4, v5
    s_mov_b32 s15, 0x20000
    v_xor_b32 v5, s22, v5
    s_mov_b32 m0, s21
    s_lshr_b32 s17, s2, 5
    s_and_b32 s16, s2, 3
    s_lshl3_add_u32 s19, s16, s17
    s_mulk_i32 s19, 125
    s_lshr_b32 s31, s3, 6
    s_add_u32 s20, s19, s31
    s_sub_u32 s20, s20, 4
    s_lshl_b32 s20, s20, 9
    v_bfi_b32 v9, 2, v6, v0
    v_and_b32 v9, 7, v9
    v_lshl_add_u32 v3, v9, 4, s20
    v_and_b32 v9, 56, v0
    v_lshl_add_u32 v3, v9, 10, v3
    v_add_u32 v7, 0x800, v3
    s_bfe_u32 s16, s2, 0x10002
    s_mul_i32 s16, s16, 2048000
    s_mul_i32 s23, s3, 17
    s_lshr_b32 s4, s4, 1
    s_sub_u32 s23, s4, s23
    s_mov_b32 s10, 2048000
    s_mov_b32 s11, 0x20000
    """)
    if fine: a.stamp(1)
    a("s_waitcnt lgkmcnt(0)")
    if fine: a.stamp(2)
    XC = XB + PB + 1088
    setup = {
        "x": "s_add_u32 s8, s8, s16\ns_addc_u32 s9, s9, 0",
        "xt": f"""s_add_u32 s22, s19, 124
            s_lshl2_add_u32 s22, s22, s31
            s_lshl_b32 s22, s22, 7
            v_and_b32 v4, 7, v0
            v_lshl_add_u32 v8, v4, 4, s22
            s_mul_i32 s5, s31, {XP}
            s_cmp_eq_u32 s31, 3
            s_cselect_b32 s5, 0, s5
            s_cmp_eq_u32 s31, 0
            s_cselect_b32 s5, -128, s5""",
        "pfw": """s_lshl2_add_u32 s22, s2, s31
            s_lshl_b32 s22, s22, 7
            v_and_b32 v12, 3, v0
            v_lshl_add_u32 v10, v12, 18, s22
            v_and_b32 v13, 4, v0
            v_lshl_add_u32 v10, v13, 15, v10""",
        "pf3": """s_lshr_b32 s22, s2, 3
            s_lshl2_add_u32 s22, s22, s31
            s_lshl_b32 s22, s22, 9
            s_addk_i32 s22, 384
            v_and_b32 v12, 3, v0
            v_lshl_add_u32 v19, v12, 18, s22
            v_and_b32 v13, 12, v0
            v_lshl_add_u32 v19, v13, 14, v19""",
        "st": f"""s_mov_b32 s4, 0x40004000
            v_lshrrev_b32 v14, 3, v0
            v_lshlrev_b32 v15, 4, v4
            v_mul_u32_u24 v16, {OP}, v14
            s_mov_b32 s6, {OB}
            v_add3_u32 v16, v16, v15, s6
            v_bfe_u32 v17, v0, 4, 3
            v_and_b32 v14, 1, v14
            v_lshl_add_u32 v17, v17, 4, v14
            v_lshrrev_b32 v14, 7, v0
            v_lshl_add_u32 v17, v14, 1, v17
            v_lshl_add_u32 v17, v17, 9, v15
            v_add_u32 v17, s18, v17
            v_add_u32 v18, 0x1000, v17
            s_lshl_b32 s22, s19, 9
            s_add_u32 s16, s16, s22
            s_mov_b32 s26, 64000
            s_mov_b32 s27, 0x20000
            s_add_u32 s24, s24, s16
            s_addc_u32 s25, s25, 0"""}
    if not any(it[0] == "pf3" for it in stream): del setup["pf3"]
    assert stream[0] == ("w", 0, 0)
    setup_after = {1: "x", 3: "xt", 4: "pfw", 9: "pf3", 10: "st"}
    def issue(n):
        it = stream[n]
        assert it[0] not in setup
        if it[0] == "xt":
            a(f"s_add_u32 m0, s5, {XB + 128 + 8*PB}\ns_mov_b64 exec, 0xff\nbuffer_load_dwordx4 v8, s[8:11], 0 offen lds\ns_mov_b64 exec, -1")
        elif it[0] == "x":
            c, i = it[1], it[2]
            v, o = ("v3", 0) if i == 0 else ("v7", (i-1)*2048)
            a(f"s_add_u32 m0, s23, {XC + XBASE[c] + (6 - 2*i)*PB}\ns_movk_i32 s22, {c*128 + o}\nbuffer_load_dwordx4 {v}, s[8:11], s22 offen lds")
        elif it[0] == "w":
            s, tap = it[1], it[2]
            if n: a(f"s_add_u32 m0, s21, {cell[it]*CELL}\ns_mov_b32 s22, {tap*262144 + s*16384}")
            a(f"buffer_load_dwordx4 v5, s[12:15], {'s22' if n else 0} offen lds")
        else:
            a(f"s_mov_b64 exec, {hex(it[1])}\nbuffer_load_dword v11, {'v10' if it[0] == 'pfw' else 'v19'}, s[12:15], 0 offen\ns_mov_b64 exec, -1")
        if setup_after.get(n+1) in setup: a(setup.pop(setup_after[n+1]))
    nxt, log = 0, []
    for b in range(NB):
        budget = nb0 + (max(bslot[b], -8)*16 + 128)/rate
        for (s0, n0_), (s1, n1_) in zip(sched, sched[1:]):
            if s0 <= bslot[b] <= s1: budget = n0_ + (n1_ - n0_)*(bslot[b] - s0)/(s1 - s0)
        want = n0 if b == 0 else min(len(stream), max(bpos[b] + 1 + (lamin if bslot[b] < lasw else lamin2), int(budget)))
        while nxt < want:
            it = stream[nxt]
            if it[0] == "w":
                n = wseq.index(it)
                if n >= NC and cell_free_at.get(wseq[n-NC], 99) > b-1: break
            if it[0] == "x" and it[1] == 3 and st["xdead"] > b-1: break
            issue(nxt); nxt += 1
        assert nxt > bpos[b], (b, nxt)
        log.append(nxt - bpos[b] - 1)
        if fine and b == 0:
            for q in range(min(len(stream), 13*fine)):
                while nxt < min(len(stream), q + 1 + lamin): issue(nxt); nxt += 1
                a(f"s_waitcnt vmcnt({nxt-1-q})")
                if q % fine == fine-1: a.stamp(3 + q//fine)
            a.dump_stamps(va=20)
            a("s_endpgm\nL_cpro:")
            a.dump_stamps(va=80)
            a("L_end:\ns_endpgm")
            a.write(name + ".s"); build(name + ".s", name + ".co")
            return f"{name}.co:256:512:{LDS}:4:{a.nstamps}:0"
        a(f"s_waitcnt vmcnt({nxt - bpos[b] - 1})\ns_barrier")
    assert nxt == len(stream) and not setup
    if verbose: print("lookahead", log, "bpos", bpos, len(stream))
    def store(i): return f"buffer_store_dwordx4 v[{32+4*i}:{35+4*i}], v{17 + i//2}, s[24:27], 0 offen offset:{(i%2)*2048} {stflags}"
    def read(i): return f"ds_read_b128 v[{32+4*i}:{35+4*i}], v16 offset:{i*32*OP}\ns_waitcnt lgkmcnt(0)"
    for i in range(4):
        r = 32 + 4*i
        if i == 3:
            a(f"s_cmp_lt_u32 s31, 2\ns_cbranch_scc1 L_poll3\ns_barrier\n{read(3)}\n{store(3)}\n{'s_branch L_done' if stamps else 's_endpgm'}")
        a(f"""L_poll{i}:
        {read(i)}
        v_cmp_eq_u32 vcc, s4, v{r}
        v_cmp_eq_u32 s[6:7], s4, v{r+1}
        v_cmp_eq_u32 s[32:33], s4, v{r+2}
        v_cmp_eq_u32 s[34:35], s4, v{r+3}
        s_or_b64 vcc, vcc, s[6:7]
        s_or_b64 s[32:33], s[32:33], s[34:35]
        s_or_b64 vcc, vcc, s[32:33]
        s_cbranch_scc1 L_poll{i}
        {store(i)}""")
    a("s_barrier")
    if stamps:
        a("L_done:"); a.stamp(1); a("s_waitcnt vmcnt(0)"); a.stamp(2)
    nl = a.nstamps
    if stamps: a("s_branch L_ldump")
    else: a("s_endpgm")
    a(".p2align 12\nL_cpro:")
    start = len(a.lines)
    a(f"""
    v_bfe_u32 v14, v0, 4, 2
    v_and_b32 v15, 15, v0
    v_mul_u32_u24 v15, {OP}, v15
    s_lshr_b32 s21, s3, 1
    s_add_u32 s21, s21, {OB - 128}
    v_lshl_add_u32 v15, v14, 3, v15
    v_add_u32 v15, s21, v15
    v_mov_b32 v{SEN}, 0x40004000
    v_mov_b32 v{SEN+1}, 0x40004000
    """)
    for jj in range(7): a(f"ds_write_b64 v15, v[{SEN}:{SEN+1}] offset:{jj*16*OP}")
    a(f"""
    s_bfe_u32 s3, s3, 0x20006
    v_and_b32 v12, 1, v0
    v_mul_u32_u24 v12, 1088, v12
    v_sub_u32 v12, {XB + 1088}, v12
    v_bfe_u32 v13, v0, 1, 3
    v_and_b32 v9, 2, v13
    v_xor_b32 v9, v9, v14
    v_lshl_add_u32 v9, v13, 3, v9
    v_lshl_add_u32 v2, v9, 4, v12                   ; x fragments 0..7
    v_add_u32 v13, 1, v13
    v_and_b32 v9, 2, v13
    v_xor_b32 v9, v9, v14
    v_lshl_add_u32 v9, v13, 3, v9
    v_lshl_add_u32 v3, v9, 4, v12
    v_bfe_u32 v13, v0, 2, 2
    v_lshl_add_u32 v4, v14, 3, v13
    v_lshlrev_b32 v4, 8, v4
    v_xor_b32 v13, s3, v13
    v_lshl_add_u32 v4, v13, 5, v4
    v_bfe_u32 v13, v0, 4, 1
    v_lshl_add_u32 v4, v13, 7, v4
    v_and_b32 v13, 3, v0
    v_lshl_add_u32 v4, v13, 3, v4
    v_add_u32 v5, {12*CELL}, v4
    v_xor_b32 v6, 0x80, v4                          ; g columns
    v_xor_b32 v7, 0x80, v5
    s_mov_b32 s28, 0xc038aa3b                       ; -2 log2(e)
    s_mov_b32 s29, 0xbfb8aa3b                       ; -log2(e)
    s_mov_b32 s30, 0x30800000                       ; K
    s_mov_b32 s31, 0x31000000                       ; 2K
    s_setprio 1
    s_cmp_eq_u32 0, 1
    s_waitcnt lgkmcnt(0)
    """)
    a.lines.append("@MAIN")
    if stamps:
        for i in range(14): a.nstamps = max(a.nstamps, 14)
        a.dump_stamps(va=80)
        a("s_endpgm\nL_ldump:")
        a.nstamps = nl
        a.dump_stamps(va=20)
    a("L_end:\ns_endpgm")
    head, tail = a.lines[:a.lines.index("@MAIN")], a.lines[a.lines.index("@MAIN")+1:]
    def assemble(pad_at):
        a.lines = list(head)
        for i, l in enumerate(C):
            if l.startswith("STAMP"): a.stamp(int(l[5:]))
            else: a(l)
            if i == pad_at and not jitter: a("L_pad:\ns_cbranch_scc1 L_cpro")
        a.lines += tail
    PRO = 332
    nbytes, pad_at = PRO, None
    for i, l in enumerate(C):
        nbytes += 16 if l.startswith("STAMP") else 0 if l.startswith(";") else isize(l)
        if nbytes >= 4096 and l.startswith("v_mfma") and (C[i+1].startswith("v_") or nbytes >= 4096 + 32): pad_at = i; break
    assemble(pad_at)
    if jitter:
        out, nb = [], 0
        for l in a.lines:
            if l.strip().startswith("s_cmpk_ge_u32 s3, 256"):
                out += ["    s_lshl_b32 s99, s2, 9", "    s_add_u32 s99, s99, s3", f"    s_add_u32 s99, s99, {jitter*7919}", "    s_mul_i32 s99, s99, 0x9e3779b1", "    s_lshr_b32 s98, s99, 15", "    s_xor_b32 s99, s99, s98", "    s_mul_i32 s99, s99, 0x85ebca6b", "    s_mul_i32 s98, s99, 0xc2b2ae35", "    s_and_b32 s99, s99, s98"]
            pre = l.strip() == "s_barrier" or l.strip().startswith("ds_write_b64")
            j = [f"    s_bitcmp1_b32 s99, {nb % 32}", f"    s_cbranch_scc0 L_j{nb}", f"    s_sleep {3 + nb % 9}", f"L_j{nb}:"]
            if pre and jitter % 2: out += j; nb += 1
            out.append(l)
            if pre and not jitter % 2: out += j; nb += 1
        a.lines = out
    a.write(name + ".s")
    build(name + ".s", name + ".co")
    return f"{name}.co:256:512:{LDS}:4:{nl}:{14 if stamps else 0}"

def batch(cfgs, modes=(6,), reps=48, extra=()):
    args = list(extra); files = ["work/runner2", "work/run.sh", "work/fam.py", "work/thrash.co"] + ["work/" + e.split(":")[0] for e in extra]
    for name, kw in cfgs:
        kw = dict(kw); kw.setdefault("stamps", True)
        args.append(gen(name, **kw)); files.append(f"work/{name}.co")
    cmds = [f"BRIEF=1 ./runner2 {reps} {m} 0.1 " + " ".join(args) for m in modes]
    open("run.sh", "w").write("cd work\nrocm-smi --showuniqueid 2>/dev/null | grep 'Unique ID:' | sed 's,^,mode=,'\n" + "\n".join(cmds) + "\n")
    print(json.dumps(files))

G2 = dict(xpos=((2,)*4, (12,)*4, (12,12,24,24), (36,)*4), sched=[(70,37),(130,44),(170,53),(181,55),(230,64),(250,67)], pf3=[(24,0x7000)])
```

```python
import sys, json, re
from asmlib import Asm
from build import build

KN = "standalone__autoregressive_conv_wavernn__speech_kernel"
PB = 2112
XP = 8*PB + 128
NC = 22
CELL = 4096
XB = NC*CELL
XBASE = [0, XP + 128, 2*XP + 128, 128]
OP = 144
OB = XB + 3*XP + 128
LDS = OB + 128*OP
ACC = 16
POOL0, POOL1 = 80, 248
SEN = 248
TRANS = ("v_exp_f32", "v_rcp_f32", "v_exp_f32_e64", "v_rcp_f32_e64")

def isize(l):
    return 4 if l.split()[0] in ("s_waitcnt", "s_barrier", "s_nop", "v_mul_f32", "v_exp_f32", "v_rcp_f32", "v_sub_f32") else 8
def cost(l): return 8 if l.split()[0] in TRANS else 4

def epi_groups(j):
    F = [ACC+8*j+i for i in range(4)]; G = [f+4 for f in F]
    p2 = lambda r: f"v[{r}:{r+1}]"
    e = (0, 2)
    same = lambda ops: (ops, ops)
    return [
        ([f"v_mul_f32 v{f}, s28, v{f}" for f in F], [f"v_pk_mul_f32 {p2(F[o])}, {p2(F[o])}, s[28:29] op_sel_hi:[1,0]" for o in e]),
        ([f"v_mul_f32 v{g}, s29, v{g}" for g in G], [f"v_pk_mul_f32 {p2(G[o])}, {p2(G[o])}, s[28:29] op_sel:[0,1] op_sel_hi:[1,1]" for o in e]),
        same([f"v_exp_f32 v{f}, v{f}" for f in F]),
        same([f"v_exp_f32 v{g}, v{g}" for g in G]),
        ([f"v_fma_f32 v{f}, v{f}, s30, s30 clamp" for f in F], [f"v_pk_fma_f32 {p2(F[o])}, {p2(F[o])}, s[30:31], s[30:31] op_sel_hi:[1,0,0] clamp" for o in e]),
        ([f"v_fma_f32 v{g}, v{f}, v{g}, v{f}" for f, g in zip(F, G)], [f"v_pk_fma_f32 {p2(G[o])}, {p2(F[o])}, {p2(G[o])}, {p2(F[o])}" for o in e]),
        same([f"v_rcp_f32 v{g}, v{g}" for g in G]),
        ([f"v_sub_f32 v{f}, s31, v{f}" for f in F], [f"v_pk_add_f32 {p2(F[o])}, {p2(F[o])}, s[30:31] op_sel:[0,1] op_sel_hi:[1,1] neg_lo:[1,0] neg_hi:[1,0]" for o in e]),
        ([f"v_mul_f32 v{f}, v{f}, v{g}" for f, g in zip(F, G)], [f"v_pk_mul_f32 {p2(F[o])}, {p2(F[o])}, {p2(G[o])}" for o in e]),
        same([f"v_cvt_pk_bf16_f32 v{F[o//2]}, v{F[o]}, v{F[o+1]}" for o in e]),
        same([f"ds_write_b64 v15, {p2(F[0])} offset:{j*16*OP}"]),
    ]

DEPS = {0: (), 1: (), 2: (0,), 3: (1,), 4: (2,), 5: (4, 3), 6: (5,), 7: (5,), 8: (7, 6), 9: (8,), 10: (9,)}
PACK = (0, 1, 4, 5, 7, 8)
NOPS = [4]*9 + [2, 1]
OCOST = [4, 4, 8, 8, 4, 4, 8, 4, 4, 4, 16]

def plan_tail(N, avail2, prefix, gap6=0, beam=300):
    avail = {j: min(avail2[j]) for j in range(8)}
    now = [0]
    def ready(S, j, s): return S[j][s] < NOPS[s] and (s > 1 or avail2[j][s] <= now[0]) and all(S[j][d] == NOPS[d] for d in DEPS[s])
    def remaining(S):
        return sum((NOPS[s] - S[j][s] + 1)//2*4 if s in PACK else (NOPS[s] - S[j][s])*(17 if s == 10 else OCOST[s]) for j in range(8) for s in range(11))
    def fill(S, k, t, limit, out, plain_ok):
        tiles = [j for j in range(8) if avail[j] <= k]
        while True:
            pick = None
            for cls in ((9, 6, 2, 3), PACK if plain_ok else ()):
                for j in tiles:
                    for s in cls:
                        if ready(S, j, s) and max(t, 8) + OCOST[s] <= limit: pick = (j, s); break
                    if pick: break
                if pick: break
            if not pick: return t
            j, s = pick
            out.append((j, s, S[j][s], False)); S[j][s] += 1; t = max(t, 8) + OCOST[s]
    def step(S0, k, mode):
        S = [list(r) for r in S0]; out = []; t = prefix[k]
        tiles = [j for j in range(8) if avail[j] <= k]
        if mode & 2:
            w = [j for j in tiles if ready(S, j, 10)]
            if not w or t > 8: return None
            out.append((w[0], 10, 0, False)); S[w[0]][10] = 1; t += 16
        if not mode & 1:
            t = fill(S, k, t, 16, out, True)
        else:
            t = fill(S, k, t, 28 + 8*(mode >> 2), out, False)
            t = fill(S, k, t, 28, out, True)
            n = len(out); t0 = max(t, 28)
            again = True
            while again:
                again = False
                for s in (0, 1, 7, 8, 4, 5):
                    for j in tiles:
                        while ready(S, j, s):
                            pk = S[j][s] % 2 == 0
                            out.append((j, s, S[j][s], pk)); S[j][s] += 2 if pk else 1; t0 += 4; again = True
            if len(out) == n: return None
            t = t0
        return tuple(map(tuple, S)), max(16, t), out
    start = min(avail.values())
    states = {tuple((0,)*11 for _ in range(8)): (0, [])}
    for k in range(start, N-1):
        nxt = {}; now[0] = k
        for S, (T, plan) in states.items():
            for mode in (0, 1, 2, 3, 5, 7, 9):
                r = step(S, k, mode)
                if r is None: continue
                S2, dt, out = r
                if S2 not in nxt or nxt[S2][0] > T + dt: nxt[S2] = (T + dt, plan + [out])
        states = dict(sorted(nxt.items(), key=lambda e: e[1][0] + remaining(e[0]))[:beam])
    def final(S0):
        S = [list(r) for r in S0]; out = []; t = 4; now[0] = N-1
        w = [j for j in range(7) if ready(S, j, 10)]
        if w: out.append((w[0], 10, 0, False)); S[w[0]][10] = 1; t += 16
        t = fill(S, N-1, t, 32, out, False)
        t = fill(S, N-1, t, 28, out, True)
        t = max(t, 28)
        for j in range(8):
            if j == 7:
                n = max(8 - len(out), (36 - t + 3)//4, 0)
                if n: out.append(("nop", n)); t += 4*n
            for s in range(11):
                while S[j][s] < NOPS[s]:
                    pk = s in PACK and S[j][s] % 2 == 0
                    out.append((j, s, S[j][s], pk)); S[j][s] += 2 if pk else 1
                    t += 4 if pk else 17 if s == 10 else OCOST[s]
        return out, t
    def late6(plan, rest):
        c = lambda e: 4*e[1] if e[0] == "nop" else 4 if e[3] else OCOST[e[1]]
        d = 0
        for sl in [rest] + plan[::-1]:
            for e in sl[::-1]:
                if e[:2] == (gap6[0], 10): return max(0, gap6[1] - d)
                d += c(e)
            d += 8
        return 0
    cands = [(T + final(S)[1], plan, final(S)[0]) for S, (T, plan) in states.items()]
    T, plan, rest = min(cands, key=lambda e: e[0] + late6(e[1], e[2]))
    return {start + i: p for i, p in enumerate(plan)}, rest, T - 16*(N - start)

_plans = {}
def cached_plan(N, av, prefix, gap6):
    lo = min(min(v) for v in av.values())
    key = (tuple(av.items()), tuple(prefix[k] for k in range(lo, N)), gap6)
    if key not in _plans: _plans[key] = plan_tail(N, av, prefix, gap6)
    return _plans[key]

def regs(tok):
    m = re.fullmatch(r"-?v\[(\d+):(\d+)\]", tok)
    if m: return set(range(int(m.group(1)), int(m.group(2))+1))
    m = re.fullmatch(r"-?v(\d+)", tok)
    return {int(m.group(1))} if m else set()

def check_hazards(C):
    L = [l for l in C if not l.startswith(("STAMP", ";"))]
    ops = [[t.strip(",") for t in l.split()[1:]] for l in L]
    states = lambda i: int(L[i].split()[1]) + 1 if L[i].startswith("s_nop") else 1
    for i, l in enumerate(L):
        op = l.split()[0]
        if op.startswith("v_mfma"): need = 8
        elif op in TRANS: need = 1
        else: continue
        D = regs(ops[i][0])
        n, j = 0, i + 1
        while n < need and j < len(L):
            o2 = L[j].split()[0]
            touched = set().union(*[regs(t) for t in ops[j]]) if ops[j] else set()
            if o2.startswith("v_mfma"):
                assert not ((regs(ops[j][1]) | regs(ops[j][2])) & D), (i, l, L[j])
                c = regs(ops[j][3]) | regs(ops[j][0])
                assert not (c & D) or (c == D and need == 8), (i, l, L[j])
            elif not (need == 1 and o2 in TRANS):
                assert not (touched & D), ("hazard", i, l, L[j], n)
            n += states(j); j += 1
    lastuse, k = {}, 0
    for i, l in enumerate(L):
        if l.startswith("v_mfma"):
            k += 1
            for r_ in regs(ops[i][1]) | regs(ops[i][2]): lastuse[r_] = k
        elif l.startswith("ds_read"):
            assert all(k - lastuse.get(r_, -9) >= 2 for r_ in regs(ops[i][0]))

def make_stream(xpos, xt_at=2, pfw=((2, 0x77),), pf3=(), xbar=((0,0),(0,1),(0,2),(0,3)), nobar=()):
    ws = [("w", 2*S+h, t) for S in range(8) for t in range(3) for h in range(2)]
    ins = {}
    for c in range(4):
        for i in range(4): ins.setdefault(xpos[c][i], []).append(("x", c, i))
    ins.setdefault(xt_at, []).append(("xt",))
    for at, mask in pfw: ins.setdefault(at, []).append(("pfw", mask))
    for at, mask in pf3: ins.setdefault(at, []).append(("pf3", mask))
    st = []
    for n in range(49):
        st += ins.get(n, [])
        if n < 48: st.append(ws[n])
    first_needed = max(st.index(ws[1]), st.index(("x", 0, 0)))
    bp = set(st.index(ws[n-1]) for n in range(2, 49, 2) if n not in nobar) | set(st.index(("x",)+e) for e in xbar)
    bp.add(max(i for i, it in enumerate(st) if it[0] in ("w", "x", "xt")))
    return st, sorted(p for p in bp if p >= first_needed)

def mfma_order(nw, m, defer=None):
    deferred = [(j, 7) for j in range(1, 8)] + [(j, S) for S in (6, 5, 4) for j in range(7, 0, -1)][:m]
    if defer: deferred = [(j, 7) for j in range(1, 8)] + list(defer)
    out, flip = [], [0]
    def unit(j, Ss):
        seq = [(S, t) for S in Ss for t in range(3)]
        ns = (0, 1) if flip[0] else (1, 0)
        flip[0] ^= 1
        return [(j, S, t, ns[0]) for S, t in seq] + [(j, S, t, ns[1]) for S, t in reversed(seq)]
    for S in range(8):
        js = [j for j in range(8) if (j, S) not in deferred]
        if S < nw or S == 7:
            for t in range(3):
                if S == 0 and t == 0: out += [(j, S, t, n ^ (j & 1)) for j in js for n in (1, 0)]
                else: out += [(j, S, t, n) for n in (1, 0) for j in js]
        else:
            for j in js: out += unit(j, [S])
    for j in range(1, 8):
        out += unit(j, sorted(S for jj, S in deferred if jj == j))
    assert len(out) == 384 and len(set(out)) == 384
    return out

HEADER = """
;
;   waves 4-7  compute : 16 channels each, 8 row tiles, v_mfma_f32_16x16x32_bf16 (A = w^T, B = x^T)
; Every hand-off is vmcnt / lgkmcnt wait -> s_barrier -> read; both roles execute the same 25 barriers.
"""

def gen(name, xpos, sched, nw=1, m=7, n0=12, nb0=15, lamin=11, lamin2=4, lasw=70, rate=70, lead=10, lead0=7, look=70, safe=9,
        stamps=False, stflags="sc1", fine=0, jitter=0, verbose=False, xr=False, entry=0, tailplan=None, edelay=3, gap6=(6, 0), lastbar=2, allbar=0, split=False, skipbar=(), align=0, pflds=False, pfrow=False, pads=(4096,), op=144, defer=None, lead1=None, xfl='', wfl='',
        markq=(0, 2, 4, 6, 8, 10, 12, 13, 14, 15, 16), **skw):
    args = dict(locals()); args.update(args.pop("skw"))
    a = Asm(256, 512, LDS, vgpr=256 if (stamps or not allbar) else 248, sgpr=102 if (stamps or jitter) else 32 if allbar else 40)
    a.header = HEADER
    global OP
    OP = op
    stream, bpos = make_stream(xpos, **skw)
    NB = len(bpos)
    pos = {it: i for i, it in enumerate(stream)}
    wseq = [it for it in stream if it[0] == "w"]
    cell = {it: i % NC for i, it in enumerate(wseq)}
    order = mfma_order(nw, m, defer)
    mf = [(ACC+8*j+4*n, j, ("w", S, t, n), ("x", S, j+t)) for j, S, t, n in order]
    N = len(mf)
    tile_end, first, last = {}, {}, {}
    for k, (A, j, wf, xf) in enumerate(mf):
        tile_end[j] = k
        for fr in (wf, xf):
            first.setdefault(fr, k); last[fr] = k
    witems = lambda fr: [("w", 2*fr[1], fr[2]), ("w", 2*fr[1]+1, fr[2])]
    def need_pos(fr):
        if fr[0] == "w": return max(pos[i] for i in witems(fr))
        p = pos[("x", fr[1]//2, (fr[2] % 8)//2)]
        return max(p, pos[("xt",)]) if fr[2] == 8 else p
    need_bar = {fr: min(b for b in range(NB) if bpos[b] >= need_pos(fr)) for fr in first}
    ops = []
    for fr in sorted(first, key=lambda f: (first[f], f[0])):
        ops += [(fr, 0)] if fr[0] == "x" else [(fr, 0), (fr, 1)]
    latest, taken = {}, set()
    def place(dl):
        while dl in taken: dl -= 1
        taken.add(dl); return dl
    bslot = [0]*NB
    for b in range(NB-1, -1, -1):
        mine = [o for o in ops if need_bar[o[0]] == b]
        for op in sorted(mine, key=lambda o: (-first[o[0]], -o[1])): latest[op] = place(first[op[0]] - (lead0 if first[op[0]] < 24 else lead1 if (lead1 and (first[op[0]] < 110 or first[op[0]] > 287)) else lead))
        bslot[b] = place(min([latest[o] for o in mine] + ([bslot[b+1]] if b+1 < NB else [])) - 1)
    C = []
    free = list(range(POOL0, POOL1, 4))
    reg = {}
    pending = sorted(ops, key=lambda o: latest[o])
    issued = []
    st = {"done": 0, "bar": -1}
    cell_free_at, wfr_of = {}, {}
    for fr in first:
        if fr[0] == "w":
            for it in witems(fr): wfr_of.setdefault(it, []).append(fr)
    def emit_read(op, k):
        fr, h = op
        if fr not in reg: reg[fr] = free.pop(0)
        r = reg[fr]
        if fr[0] == "x":
            S, jj = fr[1], fr[2]
            C.append(f"ds_read_b128 v[{r}:{r+3}], v{2 + jj//8} offset:{XBASE[S//2] + (S%2)*64 + (7 - jj%8)*PB}")
        else:
            off = cell[witems(fr)[0]]*CELL
            base = 4 + 2*fr[3]
            if off >= 12*CELL: off -= 12*CELL; base += 1
            C.append(f"ds_read_b64_tr_b16 v[{r+2*h}:{r+2*h+1}], v{base} offset:{off+1024*h}")
        pending.remove(op); issued.append((op, k))
    def emit_wait(frs, k):
        idx = max(i for i, (o, s) in enumerate(issued) if o[0] in frs) + 1
        if idx <= st["done"]: return 0
        while idx < len(issued) and issued[idx][1] <= k - safe: idx += 1
        n = min(15, len(issued) - idx)
        C.append(f"s_waitcnt lgkmcnt({n})")
        st["done"] = len(issued) - n
        return 4
    def emit_bar(b):
        C.append("s_barrier"); st["bar"] = b
        dn = set(o for o, s in issued[:st["done"]])
        if "xdead" not in st and all((fr, 0) in dn for fr in first if fr[0] == "x" and fr[1] < 2): st["xdead"] = b
        for it, frs in wfr_of.items():
            if it not in cell_free_at and all((fr, h) in dn for fr in frs for h in (0, 1)): cell_free_at[it] = b
    for b in range(NB):
        if bslot[b] >= 0: break
        emit_bar(b)
        for op in sorted([o for o in pending if latest[o] < 0 and need_bar[o[0]] == b], key=lambda o: (first[o[0]], o[0][0], o[1])): emit_read(op, -1)
        if b == 0 and split: C.append("STAMPB")
    emit_wait(mf[0][2:], -1)
    epi, seen, est = [], set(), 0
    prefix, obar = {}, []
    def emit_epi(e, k):
        if e[0] == "nop": C.append(f"s_nop {e[1]-1}"); return
        j, s_, i, pk = e
        t = epi_groups(j)[s_][1][i//2] if pk else epi_groups(j)[s_][0][i]
        prev = C[-1].split()
        if prev[0] in TRANS and t.split()[0] not in TRANS and regs(prev[1].strip(",")) & set().union(*[regs(x.strip(",")) for x in t.split()[1:]]):
            C.append("s_nop 0")
        C.append(t)
        if s_ == 10:
            issued.append(((("o", j), 0), k))
            if allbar and j % 2 and j < 7 and j//2 not in skipbar: obar.append([k + (allbar[j//2] if isinstance(allbar, tuple) else allbar), j, 0])
    marks = [max(0, int(N*q/16) - 1) for q in markq]
    for k, (A, j, wf, xf) in enumerate(mf):
        if k <= tile_end[0]:
            if k == 0 or order[k][1] != order[k-1][1]: C.append(f"; channels {32*order[k][1]}..{32*order[k][1]+31}")
        elif order[k][0] != order[k-1][0]: C.append(f"; remaining steps of row tile {j}, activation of finished tiles in the MFMA shadows")
        src = f"v[{A}:{A+3}]" if A in seen else "0"
        seen.add(A)
        C.append(f"v_mfma_f32_16x16x32_bf16 v[{A}:{A+3}], v[{reg[wf]}:{reg[wf]+3}], v[{reg[xf]}:{reg[xf]+3}], {src}")
        for fr in (wf, xf):
            if last[fr] == k: free.append(reg[fr])
        used = 4
        if k+1 < N:
            assert not [o for o in pending if o[0] in mf[k+1][2:]]
            used += emit_wait(mf[k+1][2:], k)
        for jj in range(8):
            if tailplan is None and tile_end[jj] + 3 == k: epi += [[list(p), q, False] for p, q in epi_groups(jj)]
        intail = k >= tile_end[0] + edelay
        b = st["bar"] + 1
        if b < NB and bslot[b] <= k:
            emit_bar(b); used += 8
        elif epi and epi[0][0][0].startswith("ds_write") and used <= 8:
            C.append(epi.pop(0)[0][0]); issued.append(((("o", k), 0), k)); used += 8
        elif used <= 8:
            cand = [o for o in pending if need_bar[o[0]] <= st["bar"] and (o[0] in reg or len(free) > 2) and latest[o] - k <= (2 if intail else look)]
            if cand: emit_read(cand[0], k); used += 8
        prefix[k] = used
        if isinstance(tailplan, tuple):
            mine = tailplan[0].get(k, [])
            if obar and obar[0][0] <= k and used == 4 and not any(e[1] == 10 for e in mine):
                if obar[0][2] == 0:
                    idx = max(i for i, (o, s_) in enumerate(issued) if o[0] == ("o", obar[0][1])) + 1
                    n = min(15, len(issued) - idx)
                    C.append(f"s_waitcnt lgkmcnt({n})"); st["done"] = max(st["done"], len(issued) - n); obar[0][2] = 1
                else:
                    C.append("s_barrier"); obar.pop(0)
            for e in mine: emit_epi(e, k)
        if not epi and tile_end[0] <= k < tile_end[0] + edelay and used <= 12:
            C.append(f"s_nop {(16 - used)//4 - 1}"); used = 16
        used = max(used, 8)
        while epi and not epi[0][0][0].startswith("ds_write") and used + cost(epi[0][0][0]) <= 16:
            t = epi[0][0].pop(0); epi[0][2] = True
            C.append(t); used += cost(t)
            if not epi[0][0]: epi.pop(0)
        est += max(16, used)
        if stamps and k in marks: C.append(f"STAMP{1 + marks.index(k)}")
    if tailplan == "auto":
        acc_end = {A: k for k, (A, j, wf, xf) in enumerate(mf)}
        lo = tile_end[0] + edelay
        plan = cached_plan(N, {j: tuple(max(lo, acc_end[ACC+8*j+4*n] + edelay) for n in (0, 1)) for j in range(8)}, prefix, gap6)
        if verbose: print("planned exposed cycles", plan[2])
        args["tailplan"] = plan
        return gen(**args)
    rest = []
    if tailplan:
        n_ = len(C)
        for e in tailplan[1]: emit_epi(e, N)
        rest = C[n_:]
    else:
        for p, q, started in epi: rest += p if started else q
        for p, q in epi_groups(7): rest += q
        C += rest
    assert not obar
    C += ["s_waitcnt lgkmcnt(0)", "s_barrier"]
    if stamps: C += ["STAMP12", "STAMP13"]
    assert not pending and st["bar"] == NB-1 and tile_end[7] == N-1
    if align:
        out, odd = [], False
        if align & 1:
            C = [re.sub(r"^(v_(?:mul|exp|rcp|sub)_f32) ", r"\1_e64 ", l) for l in C]
        for i, l in enumerate(C):
            out.append(l)
            if l.startswith((";", "STAMP")): continue
            if isize(l) == 4: odd = not odd
            if align & 2 and odd and C[min(i+1, len(C)-1)].startswith(("v_mfma", ";")) and (l.startswith(("v_mfma", "s_waitcnt")) or (l.startswith("s_barrier") or l.startswith("ds_read")) and C[i-1].startswith("v_mfma")):
                out.append("s_nop 0"); odd = False
        C = out
    check_hazards(C)
    if verbose: print("bslot", bslot, "est", est, "rest cyc", sum(map(cost, rest)), "waits", sum(l.startswith("s_waitcnt") for l in C))

    if stamps: a.stamp(0)
    hop = "" if (jitter or fine) else "\n".join(
        f"s_cmpk_ge_u32 s3, {384 if len(pads) == 1 else 448 - 64*q}" + (" "*27 + "; some compute waves pass through the last code page first (instruction cache warm-up)" if q == 0 else "") +
        f"\ns_cbranch_scc1 L_pad{q}" for q in range(len(pads)))
    role = f"{hop}\ns_cmpk_ge_u32 s3, 256\ns_cbranch_scc1 L_cpro"
    if entry == 1: role = f"s_cmpk_lt_u32 s3, 256\ns_cbranch_scc1 L_ld\ns_waitcnt lgkmcnt(0)\n{hop}\ns_branch L_cpro\nL_ld:"
    if entry == 2: role = role.replace("384", "448")
    if entry in (3, 4): role = "s_setprio 2\n" + role
    if entry == 6: role += "\ns_setprio 1"
    a(f"""
    s_load_dwordx2 s[12:13], s[0:1], 8              ; w
    s_load_dwordx2 s[8:9], s[0:1], 0                ; x
    s_load_dwordx2 s[24:25], s[0:1], 16             ; out
    s_cmpk_ge_u32 s2, 256
    v_readfirstlane_b32 s3, v0                      ; wave * 64
    s_cbranch_scc1 L_end
    {role}
    v_lshrrev_b32 v6, 3, v0
    s_and_b32 s18, s2, 0x18
    v_xor_b32 v6, v6, v0
    s_lshl_b32 s18, s18, 4                          ; n * 128 B
    v_bfi_b32 v9, 6, v6, v0
    s_and_b32 s4, s3, 0x80
    v_and_b32 v9, 7, v9
    s_lshl2_add_u32 s22, s4, s18
    v_and_b32 v5, 0xf8, v0
    s_lshl_b32 s21, s3, 4
    v_lshlrev_b32 v5, 6, v5
    s_mov_b32 s14, 786432
    v_lshl_add_u32 v5, v9, 4, v5
    s_mov_b32 s15, 0x20000
    v_xor_b32 v5, s22, v5
    s_mov_b32 m0, s21
    s_lshr_b32 s17, s2, 5
    s_and_b32 s16, s2, 3
    s_lshl3_add_u32 s19, s16, s17
    s_mulk_i32 s19, 125
    s_lshr_b32 s31, s3, 6
    s_add_u32 s20, s19, s31
    s_sub_u32 s20, s20, 4
    s_lshl_b32 s20, s20, 9
    v_bfi_b32 v9, 2, v6, v0
    v_and_b32 v9, 7, v9
    v_lshl_add_u32 v3, v9, 4, s20
    v_and_b32 v9, 56, v0
    v_lshl_add_u32 v3, v9, 10, v3
    v_add_u32 v7, 0x800, v3
    s_bfe_u32 s16, s2, 0x10002
    s_mul_i32 s16, s16, 2048000
    s_mul_i32 s23, s3, 17
    s_lshr_b32 s4, s4, 1
    s_sub_u32 s23, s4, s23
    s_mov_b32 s10, 2048000
    s_mov_b32 s11, 0x20000
    """)
    if xr:
        a("""s_andn2_b32 s36, 0x80, s18                      ; even column tiles swap the chunks of each pair
        s_lshl_b32 s37, s36, 9
        v_add_u32 v5, s37, v5
        v_add_u32 v3, s36, v3
        v_add_u32 v7, s36, v7""".replace("s36", "s7").replace("s37", "s6"))
    if fine: a.stamp(1)
    a("s_waitcnt lgkmcnt(0)")
    if fine: a.stamp(2)
    XC = XB + PB + 1088
    setup = {
        "x": "s_add_u32 s8, s8, s16\ns_addc_u32 s9, s9, 0",
        "xt": f"""s_add_u32 s22, s19, 124
            s_lshl2_add_u32 s22, s22, s31
            s_lshl_b32 s22, s22, 7
            {"s_xor_b32 s22, s22, s7" if xr else ""}
            v_and_b32 v4, 7, v0
            v_lshl_add_u32 v8, v4, 4, s22
            s_mul_i32 s5, s31, {XP}
            s_cmp_eq_u32 s31, 3
            s_cselect_b32 s5, 0, s5
            s_cmp_eq_u32 s31, 0
            s_cselect_b32 s5, -128, s5""",
        "pfw": """s_lshl2_add_u32 s22, s2, s31
            s_lshl_b32 s22, s22, 7
            v_and_b32 v12, 3, v0
            v_lshl_add_u32 v10, v12, 18, s22
            v_and_b32 v13, 4, v0
            v_lshl_add_u32 v10, v13, 15, v10""",
        "pf3": """s_lshr_b32 s22, s2, 3
            s_lshl2_add_u32 s22, s22, s31
            s_lshl_b32 s22, s22, 9
            s_addk_i32 s22, 384
            v_and_b32 v12, 3, v0
            v_lshl_add_u32 v19, v12, 18, s22
            v_and_b32 v13, 12, v0
            v_lshl_add_u32 v19, v13, 14, v19""",
        "st": f"""{"" if allbar else "s_mov_b32 s4, 0x40004000"}
            {"v_xor_b32 v20, 0x10000, v5; v_xor_b32 v21, 0x80, v3; v_xor_b32 v22, 0x80, v7".replace("; ", chr(10)) if xr else ""}
            v_lshrrev_b32 v14, 3, v0
            v_lshlrev_b32 v15, 4, v4
            v_mul_u32_u24 v16, {OP}, v14
            s_mov_b32 s6, {OB}
            v_add3_u32 v16, v16, v15, s6
            v_bfe_u32 v17, v0, 4, 3
            v_and_b32 v14, 1, v14
            v_lshl_add_u32 v17, v17, 4, v14
            v_lshrrev_b32 v14, 7, v0
            v_lshl_add_u32 v17, v14, 1, v17
            v_lshl_add_u32 v17, v17, 9, v15
            v_add_u32 v17, s18, v17
            v_add_u32 v18, 0x1000, v17
            s_lshl_b32 s22, s19, 9
            s_add_u32 s16, s16, s22
            s_mov_b32 s26, 64000
            s_mov_b32 s27, 0x20000
            s_add_u32 s24, s24, s16
            s_addc_u32 s25, s25, 0"""}
    if pfrow:
        setup["pfw"] = """s_and_b32 s22, s2, 7
            s_lshl3_add_u32 s22, s17, s22
            s_lshl2_add_u32 s22, s22, s31
            s_lshl1_add_u32 s22, s18, s22
            s_lshl_b32 s22, s22, 10
            v_lshl_add_u32 v10, v4, 7, s22"""
    if not any(it[0] == "pf3" for it in stream): del setup["pf3"]
    assert stream[0] == ("w", 0, 0)
    setup_after = {1: "x", 3: "xt", 4: "pfw", 9: "pf3", 10: "st"}
    def issue(n):
        it = stream[n]
        assert it[0] not in setup
        if it[0] == "xt":
            a(f"s_add_u32 m0, s5, {XB + 128 + 8*PB}\ns_mov_b64 exec, 0xff\nbuffer_load_dwordx4 v8, s[8:11], 0 offen lds\ns_mov_b64 exec, -1")
        elif it[0] == "x":
            c, i = it[1], it[2]
            v, o = ("v3", 0) if i == 0 else ("v7", (i-1)*2048)
            if xr and c & 1: v, o = ("v21" if i == 0 else "v22"), o - 128
            a(f"s_add_u32 m0, s23, {XC + XBASE[c] + (6 - 2*i)*PB}\ns_movk_i32 s22, {c*128 + o}\nbuffer_load_dwordx4 {v}, s[8:11], s22 offen {xfl}lds")
        elif it[0] == "w":
            s, tap = it[1], it[2]
            odd = xr and s & 4
            if n: a(f"s_add_u32 m0, s21, {cell[it]*CELL}\ns_mov_b32 s22, {tap*262144 + (s - 4 if odd else s)*16384}")
            a(f"buffer_load_dwordx4 {'v20' if odd else 'v5'}, s[12:15], {'s22' if n else 0} offen {wfl}lds")
        else:
            if a.lines[-1].strip() == "s_mov_b64 exec, -1": a.lines.pop()
            same = stream[n-1] == ("xt",) and it[1] == 0xff
            va = "v10" if it[0] == "pfw" else "v19"
            if pflds: a(f"s_mov_b32 m0, {OB}\ns_mov_b64 exec, {hex(it[1])}\nbuffer_load_dword {va}, s[12:15], 0 offen lds\ns_mov_b64 exec, -1")
            else: a(("" if same else f"s_mov_b64 exec, {hex(it[1])}") + f"\nbuffer_load_dword v11, {va}, s[12:15], 0 offen\ns_mov_b64 exec, -1")
        if setup_after.get(n+1) in setup: a(setup.pop(setup_after[n+1]))
    nxt, log = 0, []
    for b in range(NB):
        budget = nb0 + (max(bslot[b], -8)*16 + 128)/rate
        for (s0, n0_), (s1, n1_) in zip(sched, sched[1:]):
            if s0 <= bslot[b] <= s1: budget = n0_ + (n1_ - n0_)*(bslot[b] - s0)/(s1 - s0)
        want = n0 if b == 0 else min(len(stream), max(bpos[b] + 1 + (lamin if bslot[b] < lasw else lamin2), int(budget)))
        while nxt < want:
            it = stream[nxt]
            if it[0] == "w":
                n = wseq.index(it)
                if n >= NC and cell_free_at.get(wseq[n-NC], 99) > b-1: break
            if it[0] == "x" and it[1] == 3 and st["xdead"] > b-1: break
            issue(nxt); nxt += 1
        assert nxt > bpos[b], (b, nxt)
        log.append(nxt - bpos[b] - 1)
        if fine and b == 0:
            for q in range(min(len(stream), 13*fine)):
                while nxt < min(len(stream), q + 1 + lamin): issue(nxt); nxt += 1
                a(f"s_waitcnt vmcnt({nxt-1-q})")
                if q % fine == fine-1: a.stamp(3 + q//fine)
            a.dump_stamps(va=20)
            a("s_endpgm\nL_cpro:")
            a.dump_stamps(va=80)
            a("L_end:\ns_endpgm")
            a.write(name + ".s"); build(name + ".s", name + ".co")
            return f"{name}.co:256:512:{LDS}:4:{a.nstamps}:0"
        a(f"s_waitcnt vmcnt({nxt - bpos[b] - 1})\ns_barrier")
    assert nxt == len(stream) and not setup
    if verbose: print("lookahead", log, "bpos", bpos, len(stream))
    if entry == 3: a("s_setprio 0")
    a("; ---- stores: waves 0,1 take even tiles, waves 2,3 odd tiles" + ("; one barrier publishes a pair of staged tiles" if allbar else "; a tile is ready once no marker is left"))
    def store(i): return f"buffer_store_dwordx4 v[{32+4*i}:{35+4*i}], v{17 + i//2}, s[24:27], 0 offen offset:{(i%2)*2048} {stflags}"
    def read(i): return f"ds_read_b128 v[{32+4*i}:{35+4*i}], v16 offset:{i*32*OP}\ns_waitcnt lgkmcnt(0)"
    for i in range(4):
        r = 32 + 4*i
        if allbar or (i == 3 and lastbar == 1):
            if i in skipbar: continue
            grp = [i]
            while grp[0]-1 in skipbar: grp.insert(0, grp[0]-1)
            a("s_barrier")
            for g_ in grp:
                if OP % 16: a(f"ds_read_b64 v[{32+4*g_}:{33+4*g_}], v16 offset:{g_*32*OP}\nds_read_b64 v[{34+4*g_}:{35+4*g_}], v16 offset:{g_*32*OP+8}")
                else: a(read(g_).split("\n")[0])
            for n_, g_ in enumerate(grp): a(f"s_waitcnt lgkmcnt({len(grp)-1-n_})\n{store(g_)}")
            continue
        if i == 3:
            a(f"s_cmp_lt_u32 s31, 2\ns_cbranch_scc1 L_poll3\ns_barrier\n{read(3)}\n{store(3)}\n{'s_branch L_done' if stamps else 's_endpgm'}")
        a(f"""L_poll{i}:
        {read(i)}
        v_cmp_eq_u32 vcc, s4, v{r}
        v_cmp_eq_u32 s[6:7], s4, v{r+1}
        v_cmp_eq_u32 s[32:33], s4, v{r+2}
        v_cmp_eq_u32 s[34:35], s4, v{r+3}
        s_or_b64 vcc, vcc, s[6:7]
        s_or_b64 s[32:33], s[32:33], s[34:35]
        s_or_b64 vcc, vcc, s[32:33]
        s_cbranch_scc1 L_poll{i}
        {store(i)}""")
    if lastbar == 2: a("s_barrier")
    if stamps:
        a("L_done:"); a.stamp(1); a("s_waitcnt vmcnt(0)"); a.stamp(2)
    nl = a.nstamps
    if stamps: a("s_branch L_ldump")
    else: a("s_endpgm")
    a(".p2align 12\nL_cpro:")
    start = len(a.lines)
    PA = f"""
    v_bfe_u32 v14, v0, 4, 2
    s_bfe_u32 s3, s3, 0x20006
    v_and_b32 v12, 1, v0
    v_mul_u32_u24 v12, 1088, v12
    v_sub_u32 v12, {XB + 1088}, v12
    v_bfe_u32 v10, v0, 1, 3
    v_and_b32 v9, 2, v10
    v_xor_b32 v9, v9, v14
    v_lshl_add_u32 v9, v10, 3, v9
    v_lshl_add_u32 v2, v9, 4, v12                   ; x fragments 0..7
    v_bfe_u32 v13, v0, 2, 2
    v_lshl_add_u32 v4, v14, 3, v13
    v_lshlrev_b32 v4, 8, v4
    v_xor_b32 v13, s3, v13
    v_lshl_add_u32 v4, v13, 5, v4
    v_and_b32 v13, 19, v0
    v_lshl_add_u32 v4, v13, 3, v4
    v_xor_b32 v6, 0x80, v4                          ; g columns
    s_setprio 1
    s_waitcnt lgkmcnt(0)
    """
    PBX = f"""
    v_add_u32 v10, 1, v10
    v_and_b32 v9, 2, v10
    v_xor_b32 v9, v9, v14
    v_lshl_add_u32 v9, v10, 3, v9
    v_lshl_add_u32 v3, v9, 4, v12
    v_add_u32 v5, {12*CELL}, v4                      ; cells 12..21
    v_xor_b32 v7, 0x80, v5
    v_and_b32 v15, 15, v0
    v_mul_u32_u24 v15, {OP}, v15
    s_lshl_b32 s21, s3, 5
    s_add_u32 s21, s21, {OB}
    v_lshl_add_u32 v15, v14, 3, v15
    v_add_u32 v15, s21, v15
    s_mov_b32 s28, 0xc038aa3b                       ; -2 log2(e)
    s_mov_b32 s29, 0xbfb8aa3b                       ; -log2(e)
    s_mov_b32 s30, 0x30800000                       ; K
    s_mov_b32 s31, 0x31000000                       ; 2K
    s_cmp_eq_u32 0, 1
    """
    if split: a(PA)
    else:
        a(f"""
        v_bfe_u32 v14, v0, 4, 2
        v_and_b32 v15, 15, v0
        v_mul_u32_u24 v15, {OP}, v15
        s_lshr_b32 s21, s3, 1
        s_add_u32 s21, s21, {OB - 128}
        v_lshl_add_u32 v15, v14, 3, v15
        v_add_u32 v15, s21, v15
        """)
        if not allbar: a(f"v_mov_b32 v{SEN}, 0x40004000\nv_mov_b32 v{SEN+1}, 0x40004000")
        for jj in range(0 if allbar else 5 + lastbar): a(f"ds_write_b64 v15, v[{SEN}:{SEN+1}] offset:{jj*16*OP}")
        a(f"""
        s_bfe_u32 s3, s3, 0x20006
        v_and_b32 v12, 1, v0
        v_mul_u32_u24 v12, 1088, v12
        v_sub_u32 v12, {XB + 1088}, v12
        v_bfe_u32 v13, v0, 1, 3
        v_and_b32 v9, 2, v13
        v_xor_b32 v9, v9, v14
        v_lshl_add_u32 v9, v13, 3, v9
        v_lshl_add_u32 v2, v9, 4, v12                   ; x fragments 0..7
        v_add_u32 v13, 1, v13
        v_and_b32 v9, 2, v13
        v_xor_b32 v9, v9, v14
        v_lshl_add_u32 v9, v13, 3, v9
        v_lshl_add_u32 v3, v9, 4, v12
        v_bfe_u32 v13, v0, 2, 2
        v_lshl_add_u32 v4, v14, 3, v13
        v_lshlrev_b32 v4, 8, v4
        v_xor_b32 v13, s3, v13
        v_lshl_add_u32 v4, v13, 5, v4
        v_bfe_u32 v13, v0, 4, 1
        v_lshl_add_u32 v4, v13, 7, v4
        v_and_b32 v13, 3, v0
        v_lshl_add_u32 v4, v13, 3, v4
        v_add_u32 v5, {12*CELL}, v4
        v_xor_b32 v6, 0x80, v4                          ; g columns
        v_xor_b32 v7, 0x80, v5
        s_mov_b32 s28, 0xc038aa3b                       ; -2 log2(e)
        s_mov_b32 s29, 0xbfb8aa3b                       ; -log2(e)
        s_mov_b32 s30, 0x30800000                       ; K
        s_mov_b32 s31, 0x31000000                       ; 2K
        {"" if entry in (5, 6) else "s_setprio 1"}
        s_cmp_eq_u32 0, 1
        s_waitcnt lgkmcnt(0)
        """)
    a.lines.append("@MAIN")
    if stamps:
        for i in range(14): a.nstamps = max(a.nstamps, 14)
        a.dump_stamps(va=80)
        a("s_endpgm\nL_ldump:")
        a.nstamps = nl
        a.dump_stamps(va=20)
    a("L_end:\ns_endpgm")
    head, tail = a.lines[:a.lines.index("@MAIN")], a.lines[a.lines.index("@MAIN")+1:]
    def assemble(pad_at):
        a.lines = list(head)
        for i, l in enumerate(C):
            if l == "STAMPB": a(PBX)
            elif l.startswith("STAMP"): a.stamp(int(l[5:]))
            else: a(l)
            if i in pad_at and not jitter: a(f"L_pad{pad_at.index(i)}:\ns_cbranch_scc1 L_cpro")
        a.lines += tail
    PRO = (228 if split else 260 if allbar else 316 + 8*lastbar) - (4 if entry in (5, 6) else 0)
    nbytes, pad_at = PRO, []
    for i, l in enumerate(C):
        nbytes += 16 if l.startswith("STAMP") else 0 if l.startswith(";") else isize(l)
        q = len(pad_at)
        if q < len(pads) and nbytes >= pads[q] and l.startswith("v_mfma") and (C[i+1].startswith("v_") or (q == 0 and nbytes >= pads[q] + 32)):
            pad_at.append(i); nbytes += 4
    assert len(pad_at) == len(pads)
    assemble(pad_at)
    if jitter:
        out, nb = [], 0
        for l in a.lines:
            if l.strip().startswith("s_cmpk_ge_u32 s3, 256"):
                out += ["    s_lshl_b32 s99, s2, 9", "    s_add_u32 s99, s99, s3", f"    s_add_u32 s99, s99, {jitter*7919}", "    s_mul_i32 s99, s99, 0x9e3779b1", "    s_lshr_b32 s98, s99, 15", "    s_xor_b32 s99, s99, s98", "    s_mul_i32 s99, s99, 0x85ebca6b", "    s_mul_i32 s98, s99, 0xc2b2ae35", "    s_and_b32 s99, s99, s98"]
            pre = l.strip() == "s_barrier" or l.strip().startswith("ds_write_b64")
            j = [f"    s_bitcmp1_b32 s99, {nb % 32}", f"    s_cbranch_scc0 L_j{nb}", f"    s_sleep {3 + nb % 9}", f"L_j{nb}:"]
            if pre and jitter % 2: out += j; nb += 1
            out.append(l)
            if pre and not jitter % 2: out += j; nb += 1
        a.lines = out
    a.write(name + ".s")
    build(name + ".s", name + ".co")
    return f"{name}.co:256:512:{LDS}:4:{nl}:{14 if stamps else 0}"

def batch(cfgs, modes=(6,), reps=48, extra=()):
    args = list(extra); files = ["work/runner2", "work/run.sh", "work/fam.py", "work/thrash.co"] + ["work/" + e.split(":")[0] for e in extra]
    for name, kw in cfgs:
        kw = dict(kw); kw.setdefault("stamps", True)
        args.append(gen(name, **kw)); files.append(f"work/{name}.co")
    cmds = [f"BRIEF=1 ./runner2 {reps} {m} 0.1 " + " ".join(args) for m in modes]
    open("run.sh", "w").write("cd work\nrocm-smi --showuniqueid 2>/dev/null | grep 'Unique ID:' | sed 's,^,mode=,'\n" + "\n".join(cmds) + "\n")
    print(json.dumps(files))

G2 = dict(xpos=((2,)*4, (12,)*4, (12,12,24,24), (36,)*4), sched=[(70,37),(130,44),(170,53),(181,55),(230,64),(250,67)], pf3=[(24,0x7000)])
G4 = dict(G2, entry=3, n0=13)
D1 = [(j,6) for j in range(2,8)] + [(7,5)]
G5 = dict(G4, tailplan="auto", lastbar=1, gap6=(5,330), defer=D1, edelay=3)
G6 = dict(G5, allbar=4, gap6=(5,400))
G7 = dict(G6, entry=5)
G8 = dict(G7, allbar=(2,5,4))
def SW(a, b, c, e=39): return [(70,37),(85,e),(127,a),(175,b),(223,c),(240,67)]
G9 = dict(G8, nobar=(20,22,26,28,32,34), sched=SW(45,55,62))
G10 = dict(G9, sched=SW(44,55,62,38))
def SW2(a, b, c, e, n): return [(70,e-1),(85,e),(127,a),(175,b),(223,c),(240,n)]
G11 = dict(G10, pf3=[], sched=SW2(43,54,61,38,66))
G12 = dict(G11, pfrow=True, pfw=((2,0xff),))
X4 = lambda a,b,c: ((2,)*4,(a,)*4,(b,)*4,(c,)*4)
D3 = [(j,6) for j in range(2,8)] + [(7,5),(6,5)]
B3 = dict(G10, xpos=X4(12,12,30), sched=[(70,38),(85,40),(127,49),(175,57),(223,65),(230,67)], defer=D3, allbar=(3,3,3))
B3b = dict(B3, sched=[(70,38),(85,39),(127,47),(175,56),(223,64),(233,67)])
G13 = dict(G10, pflds=True)
```

```python
import re, sys
from gen5 import XB, XP, PB, OB, LDS, CELL
OP = 144
L = [l.split(";")[0].strip() for l in open(sys.argv[1])]
i0 = next(i for i, l in enumerate(L) if l.endswith("_kernel:"))
ic = L.index("L_cpro:")
loader, comp = [l for l in L[i0+1:ic] if l], [l for l in L[ic+1:] if l]
def granules(lo, n): return set(range(lo//8, (lo+n)//8))
sbase = {"s21": lambda w: w*1024, "s23": lambda w: (w >> 1)*64 - w*1088, "s5": lambda w: (-128, XP, 2*XP, 0)[w]}
vm, ep, m0, lanes = [], 0, None, 64
lreads, lq, scratch = [], [], []
for l in loader:
    m = re.match(r"s_add_u32 m0, (s\d+), (\d+)", l)
    if m: m0 = (m.group(1), int(m.group(2)))
    if l == "s_mov_b32 m0, s21": m0 = ("s21", 0)
    if l == f"s_mov_b32 m0, {OB}": m0 = "scratch"
    m = re.match(r"s_mov_b64 exec, (\S+)", l)
    if m: lanes = 64 if m.group(1) == "-1" else int(m.group(1), 0).bit_length()
    if l.startswith("buffer_"):
        g = set()
        if l.startswith("buffer_load_dword ") and l.endswith("lds"):
            assert m0 == "scratch"; scratch.append(len(vm))
        elif l.endswith("lds"):
            for w in range(4):
                a = sbase[m0[0]](w) + m0[1]
                assert 0 <= a and a + lanes*16 <= OB
                assert not (g & granules(a, lanes*16))
                g |= granules(a, lanes*16)
        if l.startswith("buffer_store"): assert not lq, "store before its LDS read was waited for"
        vm.append({"g": g, "issue": ep, "pub": None, "done": False, "txt": l})
    m = re.match(r"s_waitcnt vmcnt\((\d+)\)", l)
    if m:
        for op in vm[:len(vm)-int(m.group(1))]: op["done"] = True
    m = re.match(r"ds_read_b128 \S+ v16 offset:(\d+)", l)
    if m:
        g = set()
        for t in range(256): g |= granules(OB + (t >> 3)*OP + (t & 7)*16 + int(m.group(1)), 16)
        lreads.append((ep, g)); lq.append(1)
    if l == "s_waitcnt lgkmcnt(0)": lq = []
    if l == "s_barrier":
        ep += 1
        for op in vm:
            if op["done"] and op["pub"] is None: op["pub"] = ep
nl = ep
def xaddr(sh, lane):
    q, c = lane >> 4, lane & 15
    a, b = (c >> 1) + sh, c & 1
    return XB + (1-b)*1088 + a*128 + ((q ^ (a & 2))*16), a, b
ds, ep = [], 0
pend = {}
for l in comp:
    off = re.search(r"offset:(\d+)", l); off = int(off.group(1)) if off else 0
    m = re.match(r"ds_read_b128 v\[(\d+):(\d+)\], v([23])", l)
    if m:
        sh, g = int(m.group(3)) - 2, set()
        for lane in range(64):
            ad, a, b = xaddr(sh, lane)
            assert ad + off + 16 <= LDS
            cands = [jj for base in (0, XP+128, 2*XP+128, 128) for ks in (0, 64) for jj in range(8) if base + ks + (7-jj)*PB == off]
            if a == 8 and not (b == 0 and 0 in cands): continue
            g |= granules(ad + off, 16)
        ds.append({"g": g, "issue": ep, "done": None, "rd": True, "regs": set(range(int(m.group(1)), int(m.group(2))+1))})
    m = re.match(r"ds_read_b64_tr_b16 v\[(\d+):(\d+)\], v([4-7])", l)
    if m:
        v, g = int(m.group(3)), set()
        for w in range(4):
            for lane in range(64):
                q, r, c = lane >> 4, (lane >> 2) & 3, lane & 3
                ad = ((8*q + r)*256 + (w ^ r)*32 + (q & 1)*128 + c*8) ^ (0x80 if v >= 6 else 0)
                g |= granules(ad + (12*CELL if v & 1 else 0) + off, 8)
        ds.append({"g": g, "issue": ep, "done": None, "rd": True, "regs": set(range(int(m.group(1)), int(m.group(2))+1))})
    if l.startswith("ds_write_b64"):
        g = set()
        for w in range(4):
            for lane in range(64): g |= granules(OB + (lane & 15)*OP + (lane >> 4)*8 + w*32 + off, 8)
        ds.append({"g": g, "issue": ep, "done": None, "rd": False, "regs": set()})
    m = re.match(r"s_waitcnt lgkmcnt\((\d+)\)", l)
    if m:
        for op in ds[:len(ds)-int(m.group(1))]:
            if op["done"] is None: op["done"] = ep
    m = re.match(r"v_mfma\S+ \S+ v\[(\d+):(\d+)\], v\[(\d+):(\d+)\]", l)
    if m:
        use = set(range(int(m.group(1)), int(m.group(2))+1)) | set(range(int(m.group(3)), int(m.group(4))+1))
        for op in ds: assert op["done"] is not None or not (op["regs"] & use), ("operand not waited for", l)
    if l == "s_barrier": ep += 1
assert ep == nl, (ep, nl)
for r in ds:
    if not r["rd"]: continue
    cover = set()
    for w in vm:
        if not (w["g"] & r["g"]): continue
        before = w["pub"] is not None and w["pub"] <= r["issue"]
        after = w["issue"] > r["done"]
        assert before or after, ("race", w["txt"], r["issue"])
        if before: cover |= w["g"]
    assert r["g"] <= cover, "read of bytes never loaded"
for i, w in enumerate(vm):
    for w2 in vm[i+1:]:
        if w["g"] & w2["g"]: assert w["pub"] <= w2["issue"], "two DMAs in flight to the same bytes"
for i in scratch: assert vm[i]['pub'] <= min(w['issue'] for w in ds if not w['rd'])
for e, g in lreads:
    cover = set()
    for w in ds:
        if not w["rd"] and w["g"] & g:
            assert w["done"] is not None and w["done"] < e, "staged tile read before it was published"
            cover |= w["g"]
    assert g <= cover
print("ok:", nl, "barriers,", sum(1 for w in vm if w["g"]), "DMA,", sum(r["rd"] for r in ds), "reads,", len(lreads), "store rounds")
```

```python
import sys, json, re
from asmlib import Asm
from build import build

KN = "standalone__autoregressive_conv_wavernn__speech_kernel"
PB = 2112
XP = 8*PB + 128
NC = 22
CELL = 4096
XB = NC*CELL
XBASE = [0, XP + 128, 2*XP + 128, 128]
OP = 144
OB = XB + 3*XP + 128
LDS = OB + 128*OP
ACC = 16
POOL0, POOL1 = 80, 248
SEN = 248
TRANS = ("v_exp_f32", "v_rcp_f32", "v_exp_f32_e64", "v_rcp_f32_e64")

def isize(l):
    return 4 if l.split()[0] in ("s_waitcnt", "s_barrier", "s_nop", "v_mul_f32", "v_exp_f32", "v_rcp_f32", "v_sub_f32") else 8
def cost(l): return 8 if l.split()[0] in TRANS else 4

def epi_groups(j):
    F = [ACC+8*j+i for i in range(4)]; G = [f+4 for f in F]
    p2 = lambda r: f"v[{r}:{r+1}]"
    e = (0, 2)
    same = lambda ops: (ops, ops)
    return [
        ([f"v_mul_f32 v{f}, s28, v{f}" for f in F], [f"v_pk_mul_f32 {p2(F[o])}, {p2(F[o])}, s[28:29] op_sel_hi:[1,0]" for o in e]),
        ([f"v_mul_f32 v{g}, s29, v{g}" for g in G], [f"v_pk_mul_f32 {p2(G[o])}, {p2(G[o])}, s[28:29] op_sel:[0,1] op_sel_hi:[1,1]" for o in e]),
        same([f"v_exp_f32 v{f}, v{f}" for f in F]),
        same([f"v_exp_f32 v{g}, v{g}" for g in G]),
        ([f"v_fma_f32 v{f}, v{f}, s30, s30 clamp" for f in F], [f"v_pk_fma_f32 {p2(F[o])}, {p2(F[o])}, s[30:31], s[30:31] op_sel_hi:[1,0,0] clamp" for o in e]),
        ([f"v_fma_f32 v{g}, v{f}, v{g}, v{f}" for f, g in zip(F, G)], [f"v_pk_fma_f32 {p2(G[o])}, {p2(F[o])}, {p2(G[o])}, {p2(F[o])}" for o in e]),
        same([f"v_rcp_f32 v{g}, v{g}" for g in G]),
        ([f"v_sub_f32 v{f}, s31, v{f}" for f in F], [f"v_pk_add_f32 {p2(F[o])}, {p2(F[o])}, s[30:31] op_sel:[0,1] op_sel_hi:[1,1] neg_lo:[1,0] neg_hi:[1,0]" for o in e]),
        ([f"v_mul_f32 v{f}, v{f}, v{g}" for f, g in zip(F, G)], [f"v_pk_mul_f32 {p2(F[o])}, {p2(F[o])}, {p2(G[o])}" for o in e]),
        same([f"v_cvt_pk_bf16_f32 v{F[o//2]}, v{F[o]}, v{F[o+1]}" for o in e]),
        same([f"ds_write_b64 v15, {p2(F[0])} offset:{j*16*OP}"]),
    ]

DEPS = {0: (), 1: (), 2: (0,), 3: (1,), 4: (2,), 5: (4, 3), 6: (5,), 7: (5,), 8: (7, 6), 9: (8,), 10: (9,)}
PACK = (0, 1, 4, 5, 7, 8)
NOPS = [4]*9 + [2, 1]
OCOST = [4, 4, 8, 8, 4, 4, 8, 4, 4, 4, 16]

def plan_tail(N, avail2, prefix, gap6=0, beam=300):
    avail = {j: min(avail2[j]) for j in range(8)}
    now = [0]
    def ready(S, j, s): return S[j][s] < NOPS[s] and (s > 1 or avail2[j][s] <= now[0]) and all(S[j][d] == NOPS[d] for d in DEPS[s])
    def remaining(S):
        return sum((NOPS[s] - S[j][s] + 1)//2*4 if s in PACK else (NOPS[s] - S[j][s])*(17 if s == 10 else OCOST[s]) for j in range(8) for s in range(11))
    def fill(S, k, t, limit, out, plain_ok):
        tiles = [j for j in range(8) if avail[j] <= k]
        while True:
            pick = None
            for cls in ((9, 6, 2, 3), PACK if plain_ok else ()):
                for j in tiles:
                    for s in cls:
                        if ready(S, j, s) and max(t, 8) + OCOST[s] <= limit: pick = (j, s); break
                    if pick: break
                if pick: break
            if not pick: return t
            j, s = pick
            out.append((j, s, S[j][s], False)); S[j][s] += 1; t = max(t, 8) + OCOST[s]
    def step(S0, k, mode):
        S = [list(r) for r in S0]; out = []; t = prefix[k]
        tiles = [j for j in range(8) if avail[j] <= k]
        if mode & 2:
            w = [j for j in tiles if ready(S, j, 10)]
            if not w or t > 8: return None
            out.append((w[0], 10, 0, False)); S[w[0]][10] = 1; t += 16
        if not mode & 1:
            t = fill(S, k, t, 16, out, True)
        else:
            t = fill(S, k, t, 28 + 8*(mode >> 2), out, False)
            t = fill(S, k, t, 28, out, True)
            n = len(out); t0 = max(t, 28)
            again = True
            while again:
                again = False
                for s in (0, 1, 7, 8, 4, 5):
                    for j in tiles:
                        while ready(S, j, s):
                            pk = S[j][s] % 2 == 0
                            out.append((j, s, S[j][s], pk)); S[j][s] += 2 if pk else 1; t0 += 4; again = True
            if len(out) == n: return None
            t = t0
        return tuple(map(tuple, S)), max(16, t), out
    start = min(avail.values())
    states = {tuple((0,)*11 for _ in range(8)): (0, [])}
    for k in range(start, N-1):
        nxt = {}; now[0] = k
        for S, (T, plan) in states.items():
            for mode in (0, 1, 2, 3, 5, 7, 9):
                r = step(S, k, mode)
                if r is None: continue
                S2, dt, out = r
                if S2 not in nxt or nxt[S2][0] > T + dt: nxt[S2] = (T + dt, plan + [out])
        states = dict(sorted(nxt.items(), key=lambda e: e[1][0] + remaining(e[0]))[:beam])
    def final(S0):
        S = [list(r) for r in S0]; out = []; t = 4; now[0] = N-1
        w = [j for j in range(7) if ready(S, j, 10)]
        if w: out.append((w[0], 10, 0, False)); S[w[0]][10] = 1; t += 16
        t = fill(S, N-1, t, 32, out, False)
        t = fill(S, N-1, t, 28, out, True)
        t = max(t, 28)
        for j in range(8):
            if j == 7:
                n = max(8 - len(out), (36 - t + 3)//4, 0)
                if n: out.append(("nop", n)); t += 4*n
            for s in range(11):
                while S[j][s] < NOPS[s]:
                    pk = s in PACK and S[j][s] % 2 == 0
                    out.append((j, s, S[j][s], pk)); S[j][s] += 2 if pk else 1
                    t += 4 if pk else 17 if s == 10 else OCOST[s]
        return out, t
    def late6(plan, rest):
        c = lambda e: 4*e[1] if e[0] == "nop" else 4 if e[3] else OCOST[e[1]]
        d = 0
        for sl in [rest] + plan[::-1]:
            for e in sl[::-1]:
                if e[:2] == (gap6[0], 10): return max(0, gap6[1] - d)
                d += c(e)
            d += 8
        return 0
    cands = [(T + final(S)[1], plan, final(S)[0]) for S, (T, plan) in states.items()]
    T, plan, rest = min(cands, key=lambda e: e[0] + late6(e[1], e[2]))
    return {start + i: p for i, p in enumerate(plan)}, rest, T - 16*(N - start)

_plans = {}
def cached_plan(N, av, prefix, gap6):
    lo = min(min(v) for v in av.values())
    key = (tuple(av.items()), tuple(prefix[k] for k in range(lo, N)), gap6)
    if key not in _plans: _plans[key] = plan_tail(N, av, prefix, gap6)
    return _plans[key]

def regs(tok):
    m = re.fullmatch(r"-?v\[(\d+):(\d+)\]", tok)
    if m: return set(range(int(m.group(1)), int(m.group(2))+1))
    m = re.fullmatch(r"-?v(\d+)", tok)
    return {int(m.group(1))} if m else set()

def check_hazards(C):
    L = [l for l in C if not l.startswith(("STAMP", ";"))]
    ops = [[t.strip(",") for t in l.split()[1:]] for l in L]
    states = lambda i: int(L[i].split()[1]) + 1 if L[i].startswith("s_nop") else 1
    for i, l in enumerate(L):
        op = l.split()[0]
        if op.startswith("v_mfma"): need = 8
        elif op in TRANS: need = 1
        else: continue
        D = regs(ops[i][0])
        n, j = 0, i + 1
        while n < need and j < len(L):
            o2 = L[j].split()[0]
            touched = set().union(*[regs(t) for t in ops[j]]) if ops[j] else set()
            if o2.startswith("v_mfma"):
                assert not ((regs(ops[j][1]) | regs(ops[j][2])) & D), (i, l, L[j])
                c = regs(ops[j][3]) | regs(ops[j][0])
                assert not (c & D) or (c == D and need == 8), (i, l, L[j])
            elif not (need == 1 and o2 in TRANS):
                assert not (touched & D), ("hazard", i, l, L[j], n)
            n += states(j); j += 1
    lastuse, k = {}, 0
    for i, l in enumerate(L):
        if l.startswith("v_mfma"):
            k += 1
            for r_ in regs(ops[i][1]) | regs(ops[i][2]): lastuse[r_] = k
        elif l.startswith("ds_read"):
            assert all(k - lastuse.get(r_, -9) >= 2 for r_ in regs(ops[i][0]))

def make_stream(xpos, xt_at=2, pfw=((2, 0x77),), pf3=(), xbar=((0,0),(0,1),(0,2),(0,3)), nobar=()):
    ws = [("w", 2*S+h, t) for S in range(8) for t in range(3) for h in range(2)]
    ins = {}
    for c in range(4):
        for i in range(4): ins.setdefault(xpos[c][i], []).append(("x", c, i))
    ins.setdefault(xt_at, []).append(("xt",))
    for at, mask in pfw: ins.setdefault(at, []).append(("pfw", mask))
    for at, mask in pf3: ins.setdefault(at, []).append(("pf3", mask))
    st = []
    for n in range(49):
        st += ins.get(n, [])
        if n < 48: st.append(ws[n])
    first_needed = max(st.index(ws[1]), st.index(("x", 0, 0)))
    bp = set(st.index(ws[n-1]) for n in range(2, 49, 2) if n not in nobar) | set(st.index(("x",)+e) for e in xbar)
    bp.add(max(i for i, it in enumerate(st) if it[0] in ("w", "x", "xt")))
    return st, sorted(p for p in bp if p >= first_needed)

def mfma_order(nw, m, defer=None):
    deferred = [(j, 7) for j in range(1, 8)] + [(j, S) for S in (6, 5, 4) for j in range(7, 0, -1)][:m]
    if defer: deferred = [(j, 7) for j in range(1, 8)] + list(defer)
    out, flip = [], [0]
    def unit(j, Ss):
        seq = [(S, t) for S in Ss for t in range(3)]
        ns = (0, 1) if flip[0] else (1, 0)
        flip[0] ^= 1
        return [(j, S, t, ns[0]) for S, t in seq] + [(j, S, t, ns[1]) for S, t in reversed(seq)]
    for S in range(8):
        js = [j for j in range(8) if (j, S) not in deferred]
        if S < nw or S == 7:
            for t in range(3):
                if S == 0 and t == 0: out += [(j, S, t, n ^ (j & 1)) for j in js for n in (1, 0)]
                else: out += [(j, S, t, n) for n in (1, 0) for j in js]
        else:
            for j in js: out += unit(j, [S])
    for j in range(1, 8):
        out += unit(j, sorted(S for jj, S in deferred if jj == j))
    assert len(out) == 384 and len(set(out)) == 384
    return out

HEADER = """
;
;   waves 4-7  compute : 16 channels each, 8 row tiles, v_mfma_f32_16x16x32_bf16 (A = w^T, B = x^T)
; Every hand-off is vmcnt / lgkmcnt wait -> s_barrier -> read; both roles execute the same number of barriers.
"""

def gen(name, xpos, sched, nw=1, m=7, n0=12, nb0=15, lamin=11, lamin2=4, lasw=70, rate=70, lead=10, lead0=7, look=70, safe=9,
        stamps=False, stflags="sc1", fine=0, jitter=0, verbose=False, xr=False, entry=0, tailplan=None, edelay=3, gap6=(6, 0), lastbar=2, allbar=0, split=False, skipbar=(), align=0, bearly=None, pf3n=False, pflds=False, pfrow=False, pads=(4096,), op=144, defer=None, lead1=None, xfl='', wfl='',
        markq=(0, 2, 4, 6, 8, 10, 12, 13, 14, 15, 16), **skw):
    args = dict(locals()); args.update(args.pop("skw"))
    a = Asm(256, 512, LDS, vgpr=256 if (stamps or not allbar) else 248, sgpr=102 if (stamps or jitter) else 32 if allbar else 40)
    a.header = HEADER
    global OP
    OP = op
    stream, bpos = make_stream(xpos, **skw)
    NB = len(bpos)
    pos = {it: i for i, it in enumerate(stream)}
    wseq = [it for it in stream if it[0] == "w"]
    cell = {it: i % NC for i, it in enumerate(wseq)}
    order = mfma_order(nw, m, defer)
    mf = [(ACC+8*j+4*n, j, ("w", S, t, n), ("x", S, j+t)) for j, S, t, n in order]
    N = len(mf)
    tile_end, first, last = {}, {}, {}
    for k, (A, j, wf, xf) in enumerate(mf):
        tile_end[j] = k
        for fr in (wf, xf):
            first.setdefault(fr, k); last[fr] = k
    witems = lambda fr: [("w", 2*fr[1], fr[2]), ("w", 2*fr[1]+1, fr[2])]
    def need_pos(fr):
        if fr[0] == "w": return max(pos[i] for i in witems(fr))
        p = pos[("x", fr[1]//2, (fr[2] % 8)//2)]
        return max(p, pos[("xt",)]) if fr[2] == 8 else p
    need_bar = {fr: min(b for b in range(NB) if bpos[b] >= need_pos(fr)) for fr in first}
    ops = []
    for fr in sorted(first, key=lambda f: (first[f], f[0])):
        ops += [(fr, 0)] if fr[0] == "x" else [(fr, 0), (fr, 1)]
    latest, taken = {}, set()
    def place(dl):
        while dl in taken: dl -= 1
        taken.add(dl); return dl
    bslot = [0]*NB
    for b in range(NB-1, -1, -1):
        mine = [o for o in ops if need_bar[o[0]] == b]
        for op in sorted(mine, key=lambda o: (-first[o[0]], -o[1])): latest[op] = place(first[op[0]] - (lead0 if first[op[0]] < 24 else lead1 if (lead1 and (first[op[0]] < 110 or first[op[0]] > 287)) else lead))
        cap = [bearly[1] + 1] if bearly and bpos[b] == pos[("x",) + bearly[0]] else []
        bslot[b] = place(min([latest[o] for o in mine] + cap + ([bslot[b+1]] if b+1 < NB else [])) - 1)
    C = []
    free = list(range(POOL0, POOL1, 4))
    reg = {}
    pending = sorted(ops, key=lambda o: latest[o])
    issued = []
    st = {"done": 0, "bar": -1}
    cell_free_at, wfr_of = {}, {}
    for fr in first:
        if fr[0] == "w":
            for it in witems(fr): wfr_of.setdefault(it, []).append(fr)
    def emit_read(op, k):
        fr, h = op
        if fr not in reg: reg[fr] = free.pop(0)
        r = reg[fr]
        if fr[0] == "x":
            S, jj = fr[1], fr[2]
            C.append(f"ds_read_b128 v[{r}:{r+3}], v{2 + jj//8} offset:{XBASE[S//2] + (S%2)*64 + (7 - jj%8)*PB}")
        else:
            off = cell[witems(fr)[0]]*CELL
            base = 4 + 2*fr[3]
            if off >= 12*CELL: off -= 12*CELL; base += 1
            C.append(f"ds_read_b64_tr_b16 v[{r+2*h}:{r+2*h+1}], v{base} offset:{off+1024*h}")
        pending.remove(op); issued.append((op, k))
    def emit_wait(frs, k):
        idx = max(i for i, (o, s) in enumerate(issued) if o[0] in frs) + 1
        if idx <= st["done"]: return 0
        while idx < len(issued) and issued[idx][1] <= k - safe: idx += 1
        n = min(15, len(issued) - idx)
        C.append(f"s_waitcnt lgkmcnt({n})")
        st["done"] = len(issued) - n
        return 4
    def emit_bar(b):
        C.append("s_barrier"); st["bar"] = b
        dn = set(o for o, s in issued[:st["done"]])
        if "xdead" not in st and all((fr, 0) in dn for fr in first if fr[0] == "x" and fr[1] < 2): st["xdead"] = b
        for it, frs in wfr_of.items():
            if it not in cell_free_at and all((fr, h) in dn for fr in frs for h in (0, 1)): cell_free_at[it] = b
    for b in range(NB):
        if bslot[b] >= 0: break
        emit_bar(b)
        for op in sorted([o for o in pending if latest[o] < 0 and need_bar[o[0]] == b], key=lambda o: (first[o[0]], o[0][0], o[1])): emit_read(op, -1)
        if b == 0 and split: C.append("STAMPB")
    emit_wait(mf[0][2:], -1)
    epi, seen, est = [], set(), 0
    prefix, obar = {}, []
    def emit_epi(e, k):
        if e[0] == "nop": C.append(f"s_nop {e[1]-1}"); return
        j, s_, i, pk = e
        t = epi_groups(j)[s_][1][i//2] if pk else epi_groups(j)[s_][0][i]
        prev = C[-1].split()
        if prev[0] in TRANS and t.split()[0] not in TRANS and regs(prev[1].strip(",")) & set().union(*[regs(x.strip(",")) for x in t.split()[1:]]):
            C.append("s_nop 0")
        C.append(t)
        if s_ == 10:
            issued.append(((("o", j), 0), k))
            if allbar and j % 2 and j < 7 and j//2 not in skipbar: obar.append([k + (allbar[j//2] if isinstance(allbar, tuple) else allbar), j, 0])
    marks = [max(0, int(N*q/16) - 1) for q in markq]
    for k, (A, j, wf, xf) in enumerate(mf):
        if k <= tile_end[0]:
            if k == 0 or order[k][1] != order[k-1][1]: C.append(f"; channels {32*order[k][1]}..{32*order[k][1]+31}")
        elif order[k][0] != order[k-1][0]: C.append(f"; remaining steps of row tile {j}, activation of finished tiles in the MFMA shadows")
        src = f"v[{A}:{A+3}]" if A in seen else "0"
        seen.add(A)
        C.append(f"v_mfma_f32_16x16x32_bf16 v[{A}:{A+3}], v[{reg[wf]}:{reg[wf]+3}], v[{reg[xf]}:{reg[xf]+3}], {src}")
        for fr in (wf, xf):
            if last[fr] == k: free.append(reg[fr])
        used = 4
        if k+1 < N:
            assert not [o for o in pending if o[0] in mf[k+1][2:]]
            used += emit_wait(mf[k+1][2:], k)
        for jj in range(8):
            if tailplan is None and tile_end[jj] + 3 == k: epi += [[list(p), q, False] for p, q in epi_groups(jj)]
        intail = k >= tile_end[0] + edelay
        b = st["bar"] + 1
        if b < NB and bslot[b] <= k:
            emit_bar(b); used += 8
        elif epi and epi[0][0][0].startswith("ds_write") and used <= 8:
            C.append(epi.pop(0)[0][0]); issued.append(((("o", k), 0), k)); used += 8
        elif used <= 8:
            cand = [o for o in pending if need_bar[o[0]] <= st["bar"] and (o[0] in reg or len(free) > 2) and latest[o] - k <= (2 if intail else look)]
            if cand: emit_read(cand[0], k); used += 8
        prefix[k] = used
        if isinstance(tailplan, tuple):
            mine = tailplan[0].get(k, [])
            if obar and obar[0][0] <= k and used == 4 and not any(e[1] == 10 for e in mine):
                if obar[0][2] == 0:
                    idx = max(i for i, (o, s_) in enumerate(issued) if o[0] == ("o", obar[0][1])) + 1
                    n = min(15, len(issued) - idx)
                    C.append(f"s_waitcnt lgkmcnt({n})"); st["done"] = max(st["done"], len(issued) - n); obar[0][2] = 1
                else:
                    C.append("s_barrier"); obar.pop(0)
            for e in mine: emit_epi(e, k)
        if not epi and tile_end[0] <= k < tile_end[0] + edelay and used <= 12:
            C.append(f"s_nop {(16 - used)//4 - 1}"); used = 16
        used = max(used, 8)
        while epi and not epi[0][0][0].startswith("ds_write") and used + cost(epi[0][0][0]) <= 16:
            t = epi[0][0].pop(0); epi[0][2] = True
            C.append(t); used += cost(t)
            if not epi[0][0]: epi.pop(0)
        est += max(16, used)
        if stamps and k in marks: C.append(f"STAMP{1 + marks.index(k)}")
    if tailplan == "auto":
        acc_end = {A: k for k, (A, j, wf, xf) in enumerate(mf)}
        lo = tile_end[0] + edelay
        plan = cached_plan(N, {j: tuple(max(lo, acc_end[ACC+8*j+4*n] + edelay) for n in (0, 1)) for j in range(8)}, prefix, gap6)
        if verbose: print("planned exposed cycles", plan[2])
        args["tailplan"] = plan
        return gen(**args)
    rest = []
    if tailplan:
        n_ = len(C)
        for e in tailplan[1]: emit_epi(e, N)
        rest = C[n_:]
    else:
        for p, q, started in epi: rest += p if started else q
        for p, q in epi_groups(7): rest += q
        C += rest
    assert not obar
    C += ["s_waitcnt lgkmcnt(0)", "s_barrier"]
    if stamps: C += ["STAMP12", "STAMP13"]
    assert not pending and st["bar"] == NB-1 and tile_end[7] == N-1
    if align:
        out, odd = [], False
        if align & 1:
            C = [re.sub(r"^(v_(?:mul|exp|rcp|sub)_f32) ", r"\1_e64 ", l) for l in C]
        for i, l in enumerate(C):
            out.append(l)
            if l.startswith((";", "STAMP")): continue
            if isize(l) == 4: odd = not odd
            if align & 2 and odd and C[min(i+1, len(C)-1)].startswith(("v_mfma", ";")) and (l.startswith(("v_mfma", "s_waitcnt")) or (l.startswith("s_barrier") or l.startswith("ds_read")) and C[i-1].startswith("v_mfma")):
                out.append("s_nop 0"); odd = False
        C = out
    check_hazards(C)
    if verbose: print("bslot", bslot, "est", est, "rest cyc", sum(map(cost, rest)), "waits", sum(l.startswith("s_waitcnt") for l in C))

    if stamps: a.stamp(0)
    hop = "" if (jitter or fine) else "\n".join(
        f"s_cmpk_ge_u32 s3, {384 if len(pads) == 1 else 448 - 64*q}" + (" "*27 + "; some compute waves pass through the last code page first (instruction cache warm-up)" if q == 0 else "") +
        f"\ns_cbranch_scc1 L_pad{q}" for q in range(len(pads)))
    role = f"{hop}\ns_cmpk_ge_u32 s3, 256\ns_cbranch_scc1 L_cpro"
    if entry == 1: role = f"s_cmpk_lt_u32 s3, 256\ns_cbranch_scc1 L_ld\ns_waitcnt lgkmcnt(0)\n{hop}\ns_branch L_cpro\nL_ld:"
    if entry == 2: role = role.replace("384", "448")
    if entry in (3, 4): role = "s_setprio 2\n" + role
    if entry == 6: role += "\ns_setprio 1"
    a(f"""
    s_load_dwordx2 s[12:13], s[0:1], 8              ; w
    s_load_dwordx2 s[8:9], s[0:1], 0                ; x
    s_load_dwordx2 s[24:25], s[0:1], 16             ; out
    s_cmpk_ge_u32 s2, 256
    v_readfirstlane_b32 s3, v0                      ; wave * 64
    s_cbranch_scc1 L_end
    {role}
    v_lshrrev_b32 v6, 3, v0
    s_and_b32 s18, s2, 0x18
    v_xor_b32 v6, v6, v0
    s_lshl_b32 s18, s18, 4                          ; n * 128 B
    v_bfi_b32 v9, 6, v6, v0
    s_and_b32 s4, s3, 0x80
    v_and_b32 v9, 7, v9
    s_lshl2_add_u32 s22, s4, s18
    v_and_b32 v5, 0xf8, v0
    s_lshl_b32 s21, s3, 4
    v_lshlrev_b32 v5, 6, v5
    s_mov_b32 s14, 786432
    v_lshl_add_u32 v5, v9, 4, v5
    s_mov_b32 s15, 0x20000
    v_xor_b32 v5, s22, v5
    s_mov_b32 m0, s21
    s_lshr_b32 s17, s2, 5
    s_and_b32 s16, s2, 3
    s_lshl3_add_u32 s19, s16, s17
    s_mulk_i32 s19, 125
    s_lshr_b32 s31, s3, 6
    s_add_u32 s20, s19, s31
    s_sub_u32 s20, s20, 4
    s_lshl_b32 s20, s20, 9
    v_bfi_b32 v9, 2, v6, v0
    v_and_b32 v9, 7, v9
    v_lshl_add_u32 v3, v9, 4, s20
    v_and_b32 v9, 56, v0
    v_lshl_add_u32 v3, v9, 10, v3
    v_add_u32 v7, 0x800, v3
    s_bfe_u32 s16, s2, 0x10002
    s_mul_i32 s16, s16, 2048000
    s_mul_i32 s23, s3, 17
    s_lshr_b32 s4, s4, 1
    s_sub_u32 s23, s4, s23
    s_mov_b32 s10, 2048000
    s_mov_b32 s11, 0x20000
    """)
    if xr:
        a("""s_andn2_b32 s36, 0x80, s18                      ; even column tiles swap the chunks of each pair
        s_lshl_b32 s37, s36, 9
        v_add_u32 v5, s37, v5
        v_add_u32 v3, s36, v3
        v_add_u32 v7, s36, v7""".replace("s36", "s7").replace("s37", "s6"))
    if fine: a.stamp(1)
    a("s_waitcnt lgkmcnt(0)")
    if fine: a.stamp(2)
    XC = XB + PB + 1088
    setup = {
        "x": "s_add_u32 s8, s8, s16\ns_addc_u32 s9, s9, 0",
        "xt": f"""s_add_u32 s22, s19, 124
            s_lshl2_add_u32 s22, s22, s31
            s_lshl_b32 s22, s22, 7
            {"s_xor_b32 s22, s22, s7" if xr else ""}
            v_and_b32 v4, 7, v0
            v_lshl_add_u32 v8, v4, 4, s22
            s_mul_i32 s5, s31, {XP}
            s_cmp_eq_u32 s31, 3
            s_cselect_b32 s5, 0, s5
            s_cmp_eq_u32 s31, 0
            s_cselect_b32 s5, -128, s5""",
        "pfw": """s_lshl2_add_u32 s22, s2, s31
            s_lshl_b32 s22, s22, 7
            v_and_b32 v12, 3, v0
            v_lshl_add_u32 v10, v12, 18, s22
            v_and_b32 v13, 4, v0
            v_lshl_add_u32 v10, v13, 15, v10""",
        "pf3": """s_lshr_b32 s22, s2, 3
            s_lshl2_add_u32 s22, s22, s31
            s_lshl_b32 s22, s22, 9
            s_addk_i32 s22, 384
            v_and_b32 v12, 3, v0
            v_lshl_add_u32 v19, v12, 18, s22
            v_and_b32 v13, 12, v0
            v_lshl_add_u32 v19, v13, 14, v19""",
        "st": f"""{"" if allbar else "s_mov_b32 s4, 0x40004000"}
            {"v_xor_b32 v20, 0x10000, v5; v_xor_b32 v21, 0x80, v3; v_xor_b32 v22, 0x80, v7".replace("; ", chr(10)) if xr else ""}
            v_lshrrev_b32 v14, 3, v0
            v_lshlrev_b32 v15, 4, v4
            v_mul_u32_u24 v16, {OP}, v14
            s_mov_b32 s6, {OB}
            v_add3_u32 v16, v16, v15, s6
            v_bfe_u32 v17, v0, 4, 3
            v_and_b32 v14, 1, v14
            v_lshl_add_u32 v17, v17, 4, v14
            v_lshrrev_b32 v14, 7, v0
            v_lshl_add_u32 v17, v14, 1, v17
            v_lshl_add_u32 v17, v17, 9, v15
            v_add_u32 v17, s18, v17
            v_add_u32 v18, 0x1000, v17
            s_lshl_b32 s22, s19, 9
            s_add_u32 s16, s16, s22
            s_mov_b32 s26, 64000
            s_mov_b32 s27, 0x20000
            s_add_u32 s24, s24, s16
            s_addc_u32 s25, s25, 0"""}
    if pfrow:
        setup["pfw"] = """s_and_b32 s22, s2, 7
            s_lshl3_add_u32 s22, s17, s22
            s_lshl2_add_u32 s22, s22, s31
            s_lshl1_add_u32 s22, s18, s22
            s_lshl_b32 s22, s22, 10
            v_lshl_add_u32 v10, v4, 7, s22"""
    if pf3n:
        setup["pf3"] = """s_lshl2_add_u32 s22, s17, s31
            s_add_u32 s22, s22, s18
            s_lshl_b32 s22, s22, 11
            s_addk_i32 s22, 384
            v_and_b32 v12, 3, v0
            v_lshl_add_u32 v19, v12, 9, s22
            v_and_b32 v13, 12, v0
            v_lshl_add_u32 v19, v13, 14, v19"""
    if not any(it[0] == "pf3" for it in stream): del setup["pf3"]
    assert stream[0] == ("w", 0, 0)
    setup_after = {1: "x", 3: "xt", 4: "pfw", (5 if pf3n else 9): "pf3", 10: "st"}
    def issue(n):
        it = stream[n]
        assert it[0] not in setup
        if it[0] == "xt":
            a(f"s_add_u32 m0, s5, {XB + 128 + 8*PB}\ns_mov_b64 exec, 0xff\nbuffer_load_dwordx4 v8, s[8:11], 0 offen lds\ns_mov_b64 exec, -1")
        elif it[0] == "x":
            c, i = it[1], it[2]
            v, o = ("v3", 0) if i == 0 else ("v7", (i-1)*2048)
            if xr and c & 1: v, o = ("v21" if i == 0 else "v22"), o - 128
            a(f"s_add_u32 m0, s23, {XC + XBASE[c] + (6 - 2*i)*PB}\ns_movk_i32 s22, {c*128 + o}\nbuffer_load_dwordx4 {v}, s[8:11], s22 offen {xfl}lds")
        elif it[0] == "w":
            s, tap = it[1], it[2]
            odd = xr and s & 4
            if n: a(f"s_add_u32 m0, s21, {cell[it]*CELL}\ns_mov_b32 s22, {tap*262144 + (s - 4 if odd else s)*16384}")
            a(f"buffer_load_dwordx4 {'v20' if odd else 'v5'}, s[12:15], {'s22' if n else 0} offen {wfl}lds")
        else:
            if a.lines[-1].strip() == "s_mov_b64 exec, -1": a.lines.pop()
            same = stream[n-1] == ("xt",) and it[1] == 0xff
            va = "v10" if it[0] == "pfw" else "v19"
            if pflds: a(f"s_mov_b32 m0, {OB}\ns_mov_b64 exec, {hex(it[1])}\nbuffer_load_dword {va}, s[12:15], 0 offen lds\ns_mov_b64 exec, -1")
            else: a(("" if same else f"s_mov_b64 exec, {hex(it[1])}") + f"\nbuffer_load_dword v11, {va}, s[12:15], 0 offen\ns_mov_b64 exec, -1")
        if setup_after.get(n+1) in setup: a(setup.pop(setup_after[n+1]))
    nxt, log = 0, []
    for b in range(NB):
        budget = nb0 + (max(bslot[b], -8)*16 + 128)/rate
        for (s0, n0_), (s1, n1_) in zip(sched, sched[1:]):
            if s0 <= bslot[b] <= s1: budget = n0_ + (n1_ - n0_)*(bslot[b] - s0)/(s1 - s0)
        want = n0 if b == 0 else min(len(stream), max(bpos[b] + 1 + (lamin if bslot[b] < lasw else lamin2), int(budget)))
        while nxt < want:
            it = stream[nxt]
            if it[0] == "w":
                n = wseq.index(it)
                if n >= NC and cell_free_at.get(wseq[n-NC], 99) > b-1: break
            if it[0] == "x" and it[1] == 3 and st["xdead"] > b-1: break
            issue(nxt); nxt += 1
        assert nxt > bpos[b], (b, nxt)
        log.append(nxt - bpos[b] - 1)
        if fine and b == 0:
            for q in range(min(len(stream), 13*fine)):
                while nxt < min(len(stream), q + 1 + lamin): issue(nxt); nxt += 1
                a(f"s_waitcnt vmcnt({nxt-1-q})")
                if q % fine == fine-1: a.stamp(3 + q//fine)
            a.dump_stamps(va=20)
            a("s_endpgm\nL_cpro:")
            a.dump_stamps(va=80)
            a("L_end:\ns_endpgm")
            a.write(name + ".s"); build(name + ".s", name + ".co")
            return f"{name}.co:256:512:{LDS}:4:{a.nstamps}:0"
        a(f"s_waitcnt vmcnt({nxt - bpos[b] - 1})\ns_barrier")
    assert nxt == len(stream) and not setup
    if verbose: print("lookahead", log, "bpos", bpos, len(stream))
    if entry == 3: a("s_setprio 0")
    a("; ---- stores: waves 0,1 take even tiles, waves 2,3 odd tiles" + ("; one barrier publishes a pair of staged tiles" if allbar else "; a tile is ready once no marker is left"))
    def store(i): return f"buffer_store_dwordx4 v[{32+4*i}:{35+4*i}], v{17 + i//2}, s[24:27], 0 offen offset:{(i%2)*2048} {stflags}"
    def read(i): return f"ds_read_b128 v[{32+4*i}:{35+4*i}], v16 offset:{i*32*OP}\ns_waitcnt lgkmcnt(0)"
    for i in range(4):
        r = 32 + 4*i
        if allbar or (i == 3 and lastbar == 1):
            if i in skipbar: continue
            grp = [i]
            while grp[0]-1 in skipbar: grp.insert(0, grp[0]-1)
            a("s_barrier")
            for g_ in grp:
                if OP % 16: a(f"ds_read_b64 v[{32+4*g_}:{33+4*g_}], v16 offset:{g_*32*OP}\nds_read_b64 v[{34+4*g_}:{35+4*g_}], v16 offset:{g_*32*OP+8}")
                else: a(read(g_).split("\n")[0])
            for n_, g_ in enumerate(grp): a(f"s_waitcnt lgkmcnt({len(grp)-1-n_})\n{store(g_)}")
            continue
        if i == 3:
            a(f"s_cmp_lt_u32 s31, 2\ns_cbranch_scc1 L_poll3\ns_barrier\n{read(3)}\n{store(3)}\n{'s_branch L_done' if stamps else 's_endpgm'}")
        a(f"""L_poll{i}:
        {read(i)}
        v_cmp_eq_u32 vcc, s4, v{r}
        v_cmp_eq_u32 s[6:7], s4, v{r+1}
        v_cmp_eq_u32 s[32:33], s4, v{r+2}
        v_cmp_eq_u32 s[34:35], s4, v{r+3}
        s_or_b64 vcc, vcc, s[6:7]
        s_or_b64 s[32:33], s[32:33], s[34:35]
        s_or_b64 vcc, vcc, s[32:33]
        s_cbranch_scc1 L_poll{i}
        {store(i)}""")
    if lastbar == 2: a("s_barrier")
    if stamps:
        a("L_done:"); a.stamp(1); a("s_waitcnt vmcnt(0)"); a.stamp(2)
    nl = a.nstamps
    if stamps: a("s_branch L_ldump")
    else: a("s_endpgm")
    a(".p2align 12\nL_cpro:")
    start = len(a.lines)
    PA = f"""
    v_bfe_u32 v14, v0, 4, 2
    s_bfe_u32 s3, s3, 0x20006
    v_and_b32 v12, 1, v0
    v_mul_u32_u24 v12, 1088, v12
    v_sub_u32 v12, {XB + 1088}, v12
    v_bfe_u32 v10, v0, 1, 3
    v_and_b32 v9, 2, v10
    v_xor_b32 v9, v9, v14
    v_lshl_add_u32 v9, v10, 3, v9
    v_lshl_add_u32 v2, v9, 4, v12                   ; x fragments 0..7
    v_bfe_u32 v13, v0, 2, 2
    v_lshl_add_u32 v4, v14, 3, v13
    v_lshlrev_b32 v4, 8, v4
    v_xor_b32 v13, s3, v13
    v_lshl_add_u32 v4, v13, 5, v4
    v_and_b32 v13, 19, v0
    v_lshl_add_u32 v4, v13, 3, v4
    v_xor_b32 v6, 0x80, v4                          ; g columns
    s_setprio 1
    s_waitcnt lgkmcnt(0)
    """
    PBX = f"""
    v_add_u32 v10, 1, v10
    v_and_b32 v9, 2, v10
    v_xor_b32 v9, v9, v14
    v_lshl_add_u32 v9, v10, 3, v9
    v_lshl_add_u32 v3, v9, 4, v12
    v_add_u32 v5, {12*CELL}, v4                      ; cells 12..21
    v_xor_b32 v7, 0x80, v5
    v_and_b32 v15, 15, v0
    v_mul_u32_u24 v15, {OP}, v15
    s_lshl_b32 s21, s3, 5
    s_add_u32 s21, s21, {OB}
    v_lshl_add_u32 v15, v14, 3, v15
    v_add_u32 v15, s21, v15
    s_mov_b32 s28, 0xc038aa3b                       ; -2 log2(e)
    s_mov_b32 s29, 0xbfb8aa3b                       ; -log2(e)
    s_mov_b32 s30, 0x30800000                       ; K
    s_mov_b32 s31, 0x31000000                       ; 2K
    s_cmp_eq_u32 0, 1
    """
    if split: a(PA)
    else:
        a(f"""
        v_bfe_u32 v14, v0, 4, 2
        v_and_b32 v15, 15, v0
        v_mul_u32_u24 v15, {OP}, v15
        s_lshr_b32 s21, s3, 1
        s_add_u32 s21, s21, {OB - 128}
        v_lshl_add_u32 v15, v14, 3, v15
        v_add_u32 v15, s21, v15
        """)
        if not allbar: a(f"v_mov_b32 v{SEN}, 0x40004000\nv_mov_b32 v{SEN+1}, 0x40004000")
        for jj in range(0 if allbar else 5 + lastbar): a(f"ds_write_b64 v15, v[{SEN}:{SEN+1}] offset:{jj*16*OP}")
        a(f"""
        s_bfe_u32 s3, s3, 0x20006
        v_and_b32 v12, 1, v0
        v_mul_u32_u24 v12, 1088, v12
        v_sub_u32 v12, {XB + 1088}, v12
        v_bfe_u32 v13, v0, 1, 3
        v_and_b32 v9, 2, v13
        v_xor_b32 v9, v9, v14
        v_lshl_add_u32 v9, v13, 3, v9
        v_lshl_add_u32 v2, v9, 4, v12                   ; x fragments 0..7
        v_add_u32 v13, 1, v13
        v_and_b32 v9, 2, v13
        v_xor_b32 v9, v9, v14
        v_lshl_add_u32 v9, v13, 3, v9
        v_lshl_add_u32 v3, v9, 4, v12
        v_bfe_u32 v13, v0, 2, 2
        v_lshl_add_u32 v4, v14, 3, v13
        v_lshlrev_b32 v4, 8, v4
        v_xor_b32 v13, s3, v13
        v_lshl_add_u32 v4, v13, 5, v4
        v_bfe_u32 v13, v0, 4, 1
        v_lshl_add_u32 v4, v13, 7, v4
        v_and_b32 v13, 3, v0
        v_lshl_add_u32 v4, v13, 3, v4
        v_add_u32 v5, {12*CELL}, v4
        v_xor_b32 v6, 0x80, v4                          ; g columns
        v_xor_b32 v7, 0x80, v5
        s_mov_b32 s28, 0xc038aa3b                       ; -2 log2(e)
        s_mov_b32 s29, 0xbfb8aa3b                       ; -log2(e)
        s_mov_b32 s30, 0x30800000                       ; K
        s_mov_b32 s31, 0x31000000                       ; 2K
        {"" if entry in (5, 6) else "s_setprio 1"}
        s_cmp_eq_u32 0, 1
        s_waitcnt lgkmcnt(0)
        """)
    a.lines.append("@MAIN")
    if stamps:
        for i in range(14): a.nstamps = max(a.nstamps, 14)
        a.dump_stamps(va=80)
        a("s_endpgm\nL_ldump:")
        a.nstamps = nl
        a.dump_stamps(va=20)
    a("L_end:\ns_endpgm")
    head, tail = a.lines[:a.lines.index("@MAIN")], a.lines[a.lines.index("@MAIN")+1:]
    def assemble(pad_at):
        a.lines = list(head)
        for i, l in enumerate(C):
            if l == "STAMPB": a(PBX)
            elif l.startswith("STAMP"): a.stamp(int(l[5:]))
            else: a(l)
            if i in pad_at and not jitter: a(f"L_pad{pad_at.index(i)}:\ns_cbranch_scc1 L_cpro")
        a.lines += tail
    PRO = (228 if split else 260 if allbar else 316 + 8*lastbar) - (4 if entry in (5, 6) else 0)
    nbytes, pad_at = PRO, []
    for i, l in enumerate(C):
        nbytes += 16 if l.startswith("STAMP") else 0 if l.startswith(";") else isize(l)
        q = len(pad_at)
        if q < len(pads) and nbytes >= pads[q] and l.startswith("v_mfma") and (C[i+1].startswith("v_") or (q == 0 and nbytes >= pads[q] + 32)):
            pad_at.append(i); nbytes += 4
    assert len(pad_at) == len(pads)
    assemble(pad_at)
    if jitter:
        out, nb = [], 0
        for l in a.lines:
            if l.strip().startswith("s_cmpk_ge_u32 s3, 256"):
                out += ["    s_lshl_b32 s99, s2, 9", "    s_add_u32 s99, s99, s3", f"    s_add_u32 s99, s99, {jitter*7919}", "    s_mul_i32 s99, s99, 0x9e3779b1", "    s_lshr_b32 s98, s99, 15", "    s_xor_b32 s99, s99, s98", "    s_mul_i32 s99, s99, 0x85ebca6b", "    s_mul_i32 s98, s99, 0xc2b2ae35", "    s_and_b32 s99, s99, s98"]
            pre = l.strip() == "s_barrier" or l.strip().startswith("ds_write_b64")
            j = [f"    s_bitcmp1_b32 s99, {nb % 32}", f"    s_cbranch_scc0 L_j{nb}", f"    s_sleep {3 + nb % 9}", f"L_j{nb}:"]
            if pre and jitter % 2: out += j; nb += 1
            out.append(l)
            if pre and not jitter % 2: out += j; nb += 1
        a.lines = out
    a.write(name + ".s")
    build(name + ".s", name + ".co")
    return f"{name}.co:256:512:{LDS}:4:{nl}:{14 if stamps else 0}"

def batch(cfgs, modes=(6,), reps=48, extra=()):
    args = list(extra); files = ["work/runner2", "work/run.sh", "work/fam.py", "work/thrash.co"] + ["work/" + e.split(":")[0] for e in extra]
    for name, kw in cfgs:
        kw = dict(kw); kw.setdefault("stamps", True)
        args.append(gen(name, **kw)); files.append(f"work/{name}.co")
    cmds = [f"BRIEF=1 ./runner2 {reps} {m} 0.1 " + " ".join(args) for m in modes]
    open("run.sh", "w").write("cd work\nrocm-smi --showuniqueid 2>/dev/null | grep 'Unique ID:' | sed 's,^,mode=,'\n" + "\n".join(cmds) + "\n")
    print(json.dumps(files))

G2 = dict(xpos=((2,)*4, (12,)*4, (12,12,24,24), (36,)*4), sched=[(70,37),(130,44),(170,53),(181,55),(230,64),(250,67)], pf3=[(24,0x7000)])
G4 = dict(G2, entry=3, n0=13)
D1 = [(j,6) for j in range(2,8)] + [(7,5)]
G5 = dict(G4, tailplan="auto", lastbar=1, gap6=(5,330), defer=D1, edelay=3)
G6 = dict(G5, allbar=4, gap6=(5,400))
G7 = dict(G6, entry=5)
G8 = dict(G7, allbar=(2,5,4))
def SW(a, b, c, e=39): return [(70,37),(85,e),(127,a),(175,b),(223,c),(240,67)]
G9 = dict(G8, nobar=(20,22,26,28,32,34), sched=SW(45,55,62))
G10 = dict(G9, sched=SW(44,55,62,38))
def SW2(a, b, c, e, n): return [(70,e-1),(85,e),(127,a),(175,b),(223,c),(240,n)]
G11 = dict(G10, pf3=[], sched=SW2(43,54,61,38,66))
G12 = dict(G11, pfrow=True, pfw=((2,0xff),))
X4 = lambda a,b,c: ((2,)*4,(a,)*4,(b,)*4,(c,)*4)
D3 = [(j,6) for j in range(2,8)] + [(7,5),(6,5)]
B3 = dict(G10, xpos=X4(12,12,30), sched=[(70,38),(85,40),(127,49),(175,57),(223,65),(230,67)], defer=D3, allbar=(3,3,3))
B3b = dict(B3, sched=[(70,38),(85,39),(127,47),(175,56),(223,64),(233,67)])
G13 = dict(G10, pflds=True)
G14 = dict(G13, xbar=((0,0),(0,1),(0,2),(0,3),(3,3)), bearly=((3,3),240), sched=[(70,37),(85,38),(127,44),(175,55),(223,62),(240,65),(250,67)])
G15 = dict(G14, allbar=(2,2,4))
FINAL = dict(G14, allbar=(2,2,3))
if __name__ == "__main__":
    gen("final", **dict(FINAL, verbose=True))
```

```python
import sys, json, re
from asmlib import Asm
from build import build

KN = "standalone__autoregressive_conv_wavernn__speech_kernel"
PB = 2112
XP = 8*PB + 128
NC = 22
CELL = 4096
XB = NC*CELL
XBASE = [0, XP + 128, 2*XP + 128, 128]
OP = 144
OB = XB + 3*XP + 128
LDS = OB + 128*OP
ACC = 16
POOL0, POOL1 = 80, 248
SEN = 248
TRANS = ("v_exp_f32", "v_rcp_f32", "v_exp_f32_e64", "v_rcp_f32_e64")

def isize(l):
    return 4 if l.split()[0] in ("s_waitcnt", "s_barrier", "s_nop", "v_mul_f32", "v_exp_f32", "v_rcp_f32", "v_sub_f32") else 8
def cost(l): return 8 if l.split()[0] in TRANS else 4

def epi_groups(j):
    F = [ACC+8*j+i for i in range(4)]; G = [f+4 for f in F]
    p2 = lambda r: f"v[{r}:{r+1}]"
    e = (0, 2)
    same = lambda ops: (ops, ops)
    return [
        ([f"v_mul_f32 v{f}, s28, v{f}" for f in F], [f"v_pk_mul_f32 {p2(F[o])}, {p2(F[o])}, s[28:29] op_sel_hi:[1,0]" for o in e]),
        ([f"v_mul_f32 v{g}, s29, v{g}" for g in G], [f"v_pk_mul_f32 {p2(G[o])}, {p2(G[o])}, s[28:29] op_sel:[0,1] op_sel_hi:[1,1]" for o in e]),
        same([f"v_exp_f32 v{f}, v{f}" for f in F]),
        same([f"v_exp_f32 v{g}, v{g}" for g in G]),
        ([f"v_fma_f32 v{f}, v{f}, s30, s30 clamp" for f in F], [f"v_pk_fma_f32 {p2(F[o])}, {p2(F[o])}, s[30:31], s[30:31] op_sel_hi:[1,0,0] clamp" for o in e]),
        ([f"v_fma_f32 v{g}, v{f}, v{g}, v{f}" for f, g in zip(F, G)], [f"v_pk_fma_f32 {p2(G[o])}, {p2(F[o])}, {p2(G[o])}, {p2(F[o])}" for o in e]),
        same([f"v_rcp_f32 v{g}, v{g}" for g in G]),
        ([f"v_sub_f32 v{f}, s31, v{f}" for f in F], [f"v_pk_add_f32 {p2(F[o])}, {p2(F[o])}, s[30:31] op_sel:[0,1] op_sel_hi:[1,1] neg_lo:[1,0] neg_hi:[1,0]" for o in e]),
        ([f"v_mul_f32 v{f}, v{f}, v{g}" for f, g in zip(F, G)], [f"v_pk_mul_f32 {p2(F[o])}, {p2(F[o])}, {p2(G[o])}" for o in e]),
        same([f"v_cvt_pk_bf16_f32 v{F[o//2]}, v{F[o]}, v{F[o+1]}" for o in e]),
        same([f"ds_write_b64 v15, {p2(F[0])} offset:{j*16*OP}"]),
    ]

DEPS = {0: (), 1: (), 2: (0,), 3: (1,), 4: (2,), 5: (4, 3), 6: (5,), 7: (5,), 8: (7, 6), 9: (8,), 10: (9,)}
PACK = (0, 1, 4, 5, 7, 8)
NOPS = [4]*9 + [2, 1]
OCOST = [4, 4, 8, 8, 4, 4, 8, 4, 4, 4, 16]

def plan_tail(N, avail2, prefix, gap6=0, beam=300):
    avail = {j: min(avail2[j]) for j in range(8)}
    now = [0]
    def ready(S, j, s): return S[j][s] < NOPS[s] and (s > 1 or avail2[j][s] <= now[0]) and all(S[j][d] == NOPS[d] for d in DEPS[s])
    def remaining(S):
        return sum((NOPS[s] - S[j][s] + 1)//2*4 if s in PACK else (NOPS[s] - S[j][s])*(17 if s == 10 else OCOST[s]) for j in range(8) for s in range(11))
    def fill(S, k, t, limit, out, plain_ok):
        tiles = [j for j in range(8) if avail[j] <= k]
        while True:
            pick = None
            for cls in ((9, 6, 2, 3), PACK if plain_ok else ()):
                for j in tiles:
                    for s in cls:
                        if ready(S, j, s) and max(t, 8) + OCOST[s] <= limit: pick = (j, s); break
                    if pick: break
                if pick: break
            if not pick: return t
            j, s = pick
            out.append((j, s, S[j][s], False)); S[j][s] += 1; t = max(t, 8) + OCOST[s]
    def step(S0, k, mode):
        S = [list(r) for r in S0]; out = []; t = prefix[k]
        tiles = [j for j in range(8) if avail[j] <= k]
        if mode & 2:
            w = [j for j in tiles if ready(S, j, 10)]
            if not w or t > 8: return None
            out.append((w[0], 10, 0, False)); S[w[0]][10] = 1; t += 16
        if not mode & 1:
            t = fill(S, k, t, 16, out, True)
        else:
            t = fill(S, k, t, 28 + 8*(mode >> 2), out, False)
            t = fill(S, k, t, 28, out, True)
            n = len(out); t0 = max(t, 28)
            again = True
            while again:
                again = False
                for s in (0, 1, 7, 8, 4, 5):
                    for j in tiles:
                        while ready(S, j, s):
                            pk = S[j][s] % 2 == 0
                            out.append((j, s, S[j][s], pk)); S[j][s] += 2 if pk else 1; t0 += 4; again = True
            if len(out) == n: return None
            t = t0
        return tuple(map(tuple, S)), max(16, t), out
    start = min(avail.values())
    states = {tuple((0,)*11 for _ in range(8)): (0, [])}
    for k in range(start, N-1):
        nxt = {}; now[0] = k
        for S, (T, plan) in states.items():
            for mode in (0, 1, 2, 3, 5, 7, 9):
                r = step(S, k, mode)
                if r is None: continue
                S2, dt, out = r
                if S2 not in nxt or nxt[S2][0] > T + dt: nxt[S2] = (T + dt, plan + [out])
        states = dict(sorted(nxt.items(), key=lambda e: e[1][0] + remaining(e[0]))[:beam])
    def final(S0):
        S = [list(r) for r in S0]; out = []; t = 4; now[0] = N-1
        w = [j for j in range(7) if ready(S, j, 10)]
        if w: out.append((w[0], 10, 0, False)); S[w[0]][10] = 1; t += 16
        t = fill(S, N-1, t, 32, out, False)
        t = fill(S, N-1, t, 28, out, True)
        t = max(t, 28)
        for j in range(8):
            if j == 7:
                n = max(8 - len(out), (36 - t + 3)//4, 0)
                if n: out.append(("nop", n)); t += 4*n
            for s in range(11):
                while S[j][s] < NOPS[s]:
                    pk = s in PACK and S[j][s] % 2 == 0
                    out.append((j, s, S[j][s], pk)); S[j][s] += 2 if pk else 1
                    t += 4 if pk else 17 if s == 10 else OCOST[s]
        return out, t
    def late6(plan, rest):
        c = lambda e: 4*e[1] if e[0] == "nop" else 4 if e[3] else OCOST[e[1]]
        d = 0
        for sl in [rest] + plan[::-1]:
            for e in sl[::-1]:
                if e[:2] == (gap6[0], 10): return max(0, gap6[1] - d)
                d += c(e)
            d += 8
        return 0
    cands = [(T + final(S)[1], plan, final(S)[0]) for S, (T, plan) in states.items()]
    T, plan, rest = min(cands, key=lambda e: e[0] + late6(e[1], e[2]))
    return {start + i: p for i, p in enumerate(plan)}, rest, T - 16*(N - start)

_plans = {}
def cached_plan(N, av, prefix, gap6):
    lo = min(min(v) for v in av.values())
    key = (tuple(av.items()), tuple(prefix[k] for k in range(lo, N)), gap6)
    if key not in _plans: _plans[key] = plan_tail(N, av, prefix, gap6)
    return _plans[key]

def regs(tok):
    m = re.fullmatch(r"-?v\[(\d+):(\d+)\]", tok)
    if m: return set(range(int(m.group(1)), int(m.group(2))+1))
    m = re.fullmatch(r"-?v(\d+)", tok)
    return {int(m.group(1))} if m else set()

def check_hazards(C):
    L = [l for l in C if not l.startswith(("STAMP", ";"))]
    ops = [[t.strip(",") for t in l.split()[1:]] for l in L]
    states = lambda i: int(L[i].split()[1]) + 1 if L[i].startswith("s_nop") else 1
    for i, l in enumerate(L):
        op = l.split()[0]
        if op.startswith("v_mfma"): need = 8
        elif op in TRANS: need = 1
        else: continue
        D = regs(ops[i][0])
        n, j = 0, i + 1
        while n < need and j < len(L):
            o2 = L[j].split()[0]
            touched = set().union(*[regs(t) for t in ops[j]]) if ops[j] else set()
            if o2.startswith("v_mfma"):
                assert not ((regs(ops[j][1]) | regs(ops[j][2])) & D), (i, l, L[j])
                c = regs(ops[j][3]) | regs(ops[j][0])
                assert not (c & D) or (c == D and need == 8), (i, l, L[j])
            elif not (need == 1 and o2 in TRANS):
                assert not (touched & D), ("hazard", i, l, L[j], n)
            n += states(j); j += 1
    lastuse, k = {}, 0
    for i, l in enumerate(L):
        if l.startswith("v_mfma"):
            k += 1
            for r_ in regs(ops[i][1]) | regs(ops[i][2]): lastuse[r_] = k
        elif l.startswith("ds_read"):
            assert all(k - lastuse.get(r_, -9) >= 2 for r_ in regs(ops[i][0]))

def make_stream(xpos, xt_at=2, pfw=((2, 0x77),), pf3=(), xbar=((0,0),(0,1),(0,2),(0,3)), nobar=()):
    ws = [("w", 2*S+h, t) for S in range(8) for t in range(3) for h in range(2)]
    ins = {}
    for c in range(4):
        for i in range(4): ins.setdefault(xpos[c][i], []).append(("x", c, i))
    ins.setdefault(xt_at, []).append(("xt",))
    for at, mask in pfw: ins.setdefault(at, []).append(("pfw", mask))
    for at, mask in pf3: ins.setdefault(at, []).append(("pf3", mask))
    st = []
    for n in range(49):
        st += ins.get(n, [])
        if n < 48: st.append(ws[n])
    first_needed = max(st.index(ws[1]), st.index(("x", 0, 0)))
    bp = set(st.index(ws[n-1]) for n in range(2, 49, 2) if n not in nobar) | set(st.index(("x",)+e) for e in xbar)
    bp.add(max(i for i, it in enumerate(st) if it[0] in ("w", "x", "xt")))
    return st, sorted(p for p in bp if p >= first_needed)

def mfma_order(nw, m, defer=None):
    deferred = [(j, 7) for j in range(1, 8)] + [(j, S) for S in (6, 5, 4) for j in range(7, 0, -1)][:m]
    if defer: deferred = [(j, 7) for j in range(1, 8)] + list(defer)
    out, flip = [], [0]
    def unit(j, Ss):
        seq = [(S, t) for S in Ss for t in range(3)]
        ns = (0, 1) if flip[0] else (1, 0)
        flip[0] ^= 1
        return [(j, S, t, ns[0]) for S, t in seq] + [(j, S, t, ns[1]) for S, t in reversed(seq)]
    for S in range(8):
        js = [j for j in range(8) if (j, S) not in deferred]
        if S < nw or S == 7:
            for t in range(3):
                if S == 0 and t == 0: out += [(j, S, t, n ^ (j & 1)) for j in js for n in (1, 0)]
                else: out += [(j, S, t, n) for n in (1, 0) for j in js]
        else:
            for j in js: out += unit(j, [S])
    for j in range(1, 8):
        out += unit(j, sorted(S for jj, S in deferred if jj == j))
    assert len(out) == 384 and len(set(out)) == 384
    return out

HEADER = """
;
;   waves 4-7  compute : 16 channels each, 8 row tiles, v_mfma_f32_16x16x32_bf16 (A = w^T, B = x^T)
; Every hand-off is vmcnt / lgkmcnt wait -> s_barrier -> read; both roles execute the same number of barriers.
"""

def gen(name, xpos, sched, nw=1, m=7, n0=12, nb0=15, lamin=11, lamin2=4, lasw=70, rate=70, lead=10, lead0=7, look=70, safe=9,
        stamps=False, stflags="sc1", fine=0, jitter=0, verbose=False, xr=False, entry=0, tailplan=None, edelay=3, gap6=(6, 0), lastbar=2, allbar=0, split=False, skipbar=(), align=0, trim=False, widen=None, bearly=None, pf3n=False, pflds=False, pfrow=False, pads=(4096,), op=144, defer=None, lead1=None, xfl='', wfl='',
        markq=(0, 2, 4, 6, 8, 10, 12, 13, 14, 15, 16), **skw):
    args = dict(locals()); args.update(args.pop("skw"))
    a = Asm(256, 512, LDS, vgpr=256 if (stamps or not allbar) else 248, sgpr=102 if (stamps or jitter) else 32 if allbar else 40)
    a.header = HEADER
    global OP
    OP = op
    stream, bpos = make_stream(xpos, **skw)
    NB = len(bpos)
    pos = {it: i for i, it in enumerate(stream)}
    wseq = [it for it in stream if it[0] == "w"]
    cell = {it: i % NC for i, it in enumerate(wseq)}
    order = mfma_order(nw, m, defer)
    mf = [(ACC+8*j+4*n, j, ("w", S, t, n), ("x", S, j+t)) for j, S, t, n in order]
    N = len(mf)
    tile_end, first, last = {}, {}, {}
    for k, (A, j, wf, xf) in enumerate(mf):
        tile_end[j] = k
        for fr in (wf, xf):
            first.setdefault(fr, k); last[fr] = k
    witems = lambda fr: [("w", 2*fr[1], fr[2]), ("w", 2*fr[1]+1, fr[2])]
    def need_pos(fr):
        if fr[0] == "w": return max(pos[i] for i in witems(fr))
        p = pos[("x", fr[1]//2, (fr[2] % 8)//2)]
        return max(p, pos[("xt",)]) if fr[2] == 8 else p
    need_bar = {fr: min(b for b in range(NB) if bpos[b] >= need_pos(fr)) for fr in first}
    ops = []
    for fr in sorted(first, key=lambda f: (first[f], f[0])):
        ops += [(fr, 0)] if fr[0] == "x" else [(fr, 0), (fr, 1)]
    latest, taken = {}, set()
    def place(dl):
        while dl in taken: dl -= 1
        taken.add(dl); return dl
    bslot = [0]*NB
    for b in range(NB-1, -1, -1):
        mine = [o for o in ops if need_bar[o[0]] == b]
        for op in sorted(mine, key=lambda o: (-first[o[0]], -o[1])): latest[op] = place(first[op[0]] - (lead0 if first[op[0]] < 24 else lead1 if (lead1 and (first[op[0]] < 110 or first[op[0]] > 287)) else lead))
        cap = [bearly[1] + 1] if bearly and bpos[b] == pos[("x",) + bearly[0]] else []
        bslot[b] = place(min([latest[o] for o in mine] + cap + ([bslot[b+1]] if b+1 < NB else [])) - 1)
    C = []
    free = list(range(POOL0, POOL1, 4))
    reg = {}
    pending = sorted(ops, key=lambda o: latest[o])
    issued = []
    st = {"done": 0, "bar": -1}
    cell_free_at, wfr_of = {}, {}
    for fr in first:
        if fr[0] == "w":
            for it in witems(fr): wfr_of.setdefault(it, []).append(fr)
    def emit_read(op, k):
        fr, h = op
        if fr not in reg: reg[fr] = free.pop(0)
        r = reg[fr]
        if fr[0] == "x":
            S, jj = fr[1], fr[2]
            C.append(f"ds_read_b128 v[{r}:{r+3}], v{2 + jj//8} offset:{XBASE[S//2] + (S%2)*64 + (7 - jj%8)*PB}")
        else:
            off = cell[witems(fr)[0]]*CELL
            base = 4 + 2*fr[3]
            if off >= 12*CELL: off -= 12*CELL; base += 1
            C.append(f"ds_read_b64_tr_b16 v[{r+2*h}:{r+2*h+1}], v{base} offset:{off+1024*h}")
        pending.remove(op); issued.append((op, k))
    def emit_wait(frs, k):
        idx = max(i for i, (o, s) in enumerate(issued) if o[0] in frs) + 1
        if idx <= st["done"]: return 0
        while idx < len(issued) and issued[idx][1] <= k - safe: idx += 1
        n = min(15, len(issued) - idx)
        C.append(f"s_waitcnt lgkmcnt({n})")
        st["done"] = len(issued) - n
        return 4
    def emit_bar(b):
        C.append("s_barrier"); st["bar"] = b
        dn = set(o for o, s in issued[:st["done"]])
        if "xdead" not in st and all((fr, 0) in dn for fr in first if fr[0] == "x" and fr[1] < 2): st["xdead"] = b
        for it, frs in wfr_of.items():
            if it not in cell_free_at and all((fr, h) in dn for fr in frs for h in (0, 1)): cell_free_at[it] = b
    for b in range(NB):
        if bslot[b] >= 0: break
        emit_bar(b)
        for op in sorted([o for o in pending if latest[o] < 0 and need_bar[o[0]] == b], key=lambda o: (first[o[0]], o[0][0], o[1])): emit_read(op, -1)
        if b == 0 and split: C.append("STAMPB")
    emit_wait(mf[0][2:], -1)
    epi, seen, est = [], set(), 0
    prefix, obar = {}, []
    def emit_epi(e, k):
        if e[0] == "nop": C.append(f"s_nop {e[1]-1}"); return
        j, s_, i, pk = e
        t = epi_groups(j)[s_][1][i//2] if pk else epi_groups(j)[s_][0][i]
        prev = C[-1].split()
        if prev[0] in TRANS and t.split()[0] not in TRANS and regs(prev[1].strip(",")) & set().union(*[regs(x.strip(",")) for x in t.split()[1:]]):
            C.append("s_nop 0")
        C.append(t)
        if s_ == 10:
            issued.append(((("o", j), 0), k))
            if allbar and j % 2 and j < 7 and j//2 not in skipbar: obar.append([k + (allbar[j//2] if isinstance(allbar, tuple) else allbar), j, 0])
    marks = [max(0, int(N*q/16) - 1) for q in markq]
    for k, (A, j, wf, xf) in enumerate(mf):
        if k <= tile_end[0]:
            if k == 0 or order[k][1] != order[k-1][1]: C.append(f"; channels {32*order[k][1]}..{32*order[k][1]+31}")
        elif order[k][0] != order[k-1][0]: C.append(f"; remaining steps of row tile {j}, activation of finished tiles in the MFMA shadows")
        src = f"v[{A}:{A+3}]" if A in seen else "0"
        seen.add(A)
        C.append(f"v_mfma_f32_16x16x32_bf16 v[{A}:{A+3}], v[{reg[wf]}:{reg[wf]+3}], v[{reg[xf]}:{reg[xf]+3}], {src}")
        for fr in (wf, xf):
            if last[fr] == k: free.append(reg[fr])
        used = 4
        if k+1 < N:
            assert not [o for o in pending if o[0] in mf[k+1][2:]]
            used += emit_wait(mf[k+1][2:], k)
        for jj in range(8):
            if tailplan is None and tile_end[jj] + 3 == k: epi += [[list(p), q, False] for p, q in epi_groups(jj)]
        intail = k >= tile_end[0] + edelay
        b = st["bar"] + 1
        if b < NB and bslot[b] <= k:
            emit_bar(b); used += 8
        elif epi and epi[0][0][0].startswith("ds_write") and used <= 8:
            C.append(epi.pop(0)[0][0]); issued.append(((("o", k), 0), k)); used += 8
        elif used <= 8:
            cand = [o for o in pending if need_bar[o[0]] <= st["bar"] and (o[0] in reg or len(free) > 2) and latest[o] - k <= (2 if intail else look)]
            if cand: emit_read(cand[0], k); used += 8
        prefix[k] = used
        if isinstance(tailplan, tuple):
            mine = tailplan[0].get(k, [])
            if obar and obar[0][0] <= k and used == 4 and not any(e[1] == 10 for e in mine):
                if obar[0][2] == 0:
                    idx = max(i for i, (o, s_) in enumerate(issued) if o[0] == ("o", obar[0][1])) + 1
                    n = min(15, len(issued) - idx)
                    C.append(f"s_waitcnt lgkmcnt({n})"); st["done"] = max(st["done"], len(issued) - n); obar[0][2] = 1
                else:
                    C.append("s_barrier"); obar.pop(0)
            for e in mine: emit_epi(e, k)
        if not epi and tile_end[0] <= k < tile_end[0] + edelay and used <= 12:
            C.append(f"s_nop {(16 - used)//4 - 1}"); used = 16
        used = max(used, 8)
        while epi and not epi[0][0][0].startswith("ds_write") and used + cost(epi[0][0][0]) <= 16:
            t = epi[0][0].pop(0); epi[0][2] = True
            C.append(t); used += cost(t)
            if not epi[0][0]: epi.pop(0)
        est += max(16, used)
        if stamps and k in marks: C.append(f"STAMP{1 + marks.index(k)}")
    if tailplan == "auto":
        acc_end = {A: k for k, (A, j, wf, xf) in enumerate(mf)}
        lo = tile_end[0] + edelay
        plan = cached_plan(N, {j: tuple(max(lo, acc_end[ACC+8*j+4*n] + edelay) for n in (0, 1)) for j in range(8)}, prefix, gap6)
        if verbose: print("planned exposed cycles", plan[2])
        args["tailplan"] = plan
        return gen(**args)
    rest = []
    if tailplan:
        n_ = len(C)
        for e in tailplan[1]: emit_epi(e, N)
        rest = C[n_:]
    else:
        for p, q, started in epi: rest += p if started else q
        for p, q in epi_groups(7): rest += q
        C += rest
    assert not obar
    C += ["s_waitcnt lgkmcnt(0)", "s_barrier"]
    if stamps: C += ["STAMP12", "STAMP13"]
    assert not pending and st["bar"] == NB-1 and tile_end[7] == N-1
    if align:
        out, odd = [], False
        if align & 1:
            C = [re.sub(r"^(v_(?:mul|exp|rcp|sub)_f32) ", r"\1_e64 ", l) for l in C]
        for i, l in enumerate(C):
            out.append(l)
            if l.startswith((";", "STAMP")): continue
            if isize(l) == 4: odd = not odd
            if align & 2 and odd and C[min(i+1, len(C)-1)].startswith(("v_mfma", ";")) and (l.startswith(("v_mfma", "s_waitcnt")) or (l.startswith("s_barrier") or l.startswith("ds_read")) and C[i-1].startswith("v_mfma")):
                out.append("s_nop 0"); odd = False
        C = out
    check_hazards(C)
    if trim:
        for i in [i for i, l in enumerate(C) if l.startswith("s_nop")][::-1]:
            try: check_hazards(C[:i] + C[i+1:]); del C[i]
            except AssertionError: pass
    if verbose: print("bslot", bslot, "est", est, "rest cyc", sum(map(cost, rest)), "waits", sum(l.startswith("s_waitcnt") for l in C))

    if stamps: a.stamp(0)
    hop = "" if (jitter or fine) else "\n".join(
        f"s_cmpk_ge_u32 s3, {384 if len(pads) == 1 else 448 - 64*q}" + (" "*27 + "; some compute waves pass through the last code page first (instruction cache warm-up)" if q == 0 else "") +
        f"\ns_cbranch_scc1 L_pad{q}" for q in range(len(pads)))
    role = f"{hop}\ns_cmpk_ge_u32 s3, 256\ns_cbranch_scc1 L_cpro"
    if entry == 1: role = f"s_cmpk_lt_u32 s3, 256\ns_cbranch_scc1 L_ld\ns_waitcnt lgkmcnt(0)\n{hop}\ns_branch L_cpro\nL_ld:"
    if entry == 2: role = role.replace("384", "448")
    if entry in (3, 4): role = "s_setprio 2\n" + role
    if entry == 6: role += "\ns_setprio 1"
    a(f"""
    s_load_dwordx2 s[12:13], s[0:1], 8              ; w
    s_load_dwordx2 s[8:9], s[0:1], 0                ; x
    s_load_dwordx2 s[24:25], s[0:1], 16             ; out
    s_cmpk_ge_u32 s2, 256
    v_readfirstlane_b32 s3, v0                      ; wave * 64
    s_cbranch_scc1 L_end
    {role}
    v_lshrrev_b32 v6, 3, v0
    s_and_b32 s18, s2, 0x18
    v_xor_b32 v6, v6, v0
    s_lshl_b32 s18, s18, 4                          ; n * 128 B
    v_bfi_b32 v9, 6, v6, v0
    s_and_b32 s4, s3, 0x80
    v_and_b32 v9, 7, v9
    s_lshl2_add_u32 s22, s4, s18
    v_and_b32 v5, 0xf8, v0
    s_lshl_b32 s21, s3, 4
    v_lshlrev_b32 v5, 6, v5
    s_mov_b32 s14, 786432
    v_lshl_add_u32 v5, v9, 4, v5
    s_mov_b32 s15, 0x20000
    v_xor_b32 v5, s22, v5
    s_mov_b32 m0, s21
    s_lshr_b32 s17, s2, 5
    s_and_b32 s16, s2, 3
    s_lshl3_add_u32 s19, s16, s17
    s_mulk_i32 s19, 125
    s_lshr_b32 s31, s3, 6
    s_add_u32 s20, s19, s31
    s_sub_u32 s20, s20, 4
    s_lshl_b32 s20, s20, 9
    v_bfi_b32 v9, 2, v6, v0
    v_and_b32 v9, 7, v9
    v_lshl_add_u32 v3, v9, 4, s20
    v_and_b32 v9, 56, v0
    v_lshl_add_u32 v3, v9, 10, v3
    v_add_u32 v7, 0x800, v3
    s_bfe_u32 s16, s2, 0x10002
    s_mul_i32 s16, s16, 2048000
    s_mul_i32 s23, s3, 17
    s_lshr_b32 s4, s4, 1
    s_sub_u32 s23, s4, s23
    s_mov_b32 s10, 2048000
    s_mov_b32 s11, 0x20000
    """)
    if xr:
        a("""s_andn2_b32 s36, 0x80, s18                      ; even column tiles swap the chunks of each pair
        s_lshl_b32 s37, s36, 9
        v_add_u32 v5, s37, v5
        v_add_u32 v3, s36, v3
        v_add_u32 v7, s36, v7""".replace("s36", "s7").replace("s37", "s6"))
    if fine: a.stamp(1)
    a("s_waitcnt lgkmcnt(0)")
    if fine: a.stamp(2)
    XC = XB + PB + 1088
    setup = {
        "x": "s_add_u32 s8, s8, s16\ns_addc_u32 s9, s9, 0",
        "xt": f"""s_add_u32 s22, s19, 124
            s_lshl2_add_u32 s22, s22, s31
            s_lshl_b32 s22, s22, 7
            {"s_xor_b32 s22, s22, s7" if xr else ""}
            v_and_b32 v4, 7, v0
            v_lshl_add_u32 v8, v4, 4, s22
            s_mul_i32 s5, s31, {XP}
            s_cmp_eq_u32 s31, 3
            s_cselect_b32 s5, 0, s5
            s_cmp_eq_u32 s31, 0
            s_cselect_b32 s5, -128, s5""",
        "pfw": """s_lshl2_add_u32 s22, s2, s31
            s_lshl_b32 s22, s22, 7
            v_and_b32 v12, 3, v0
            v_lshl_add_u32 v10, v12, 18, s22
            v_and_b32 v13, 4, v0
            v_lshl_add_u32 v10, v13, 15, v10""",
        "pf3": """s_lshr_b32 s22, s2, 3
            s_lshl2_add_u32 s22, s22, s31
            s_lshl_b32 s22, s22, 9
            s_addk_i32 s22, 384
            v_and_b32 v12, 3, v0
            v_lshl_add_u32 v19, v12, 18, s22
            v_and_b32 v13, 12, v0
            v_lshl_add_u32 v19, v13, 14, v19""",
        "st": f"""{"" if allbar else "s_mov_b32 s4, 0x40004000"}
            {"v_xor_b32 v20, 0x10000, v5; v_xor_b32 v21, 0x80, v3; v_xor_b32 v22, 0x80, v7".replace("; ", chr(10)) if xr else ""}
            v_lshrrev_b32 v14, 3, v0
            v_lshlrev_b32 v15, 4, v4
            v_mul_u32_u24 v16, {OP}, v14
            s_mov_b32 s6, {OB}
            v_add3_u32 v16, v16, v15, s6
            v_bfe_u32 v17, v0, 4, 3
            v_and_b32 v14, 1, v14
            v_lshl_add_u32 v17, v17, 4, v14
            v_lshrrev_b32 v14, 7, v0
            v_lshl_add_u32 v17, v14, 1, v17
            v_lshl_add_u32 v17, v17, 9, v15
            v_add_u32 v17, s18, v17
            v_add_u32 v18, 0x1000, v17
            s_lshl_b32 s22, s19, 9
            s_add_u32 s16, s16, s22
            s_mov_b32 s26, 64000
            s_mov_b32 s27, 0x20000
            s_add_u32 s24, s24, s16
            s_addc_u32 s25, s25, 0"""}
    if pfrow:
        setup["pfw"] = """s_and_b32 s22, s2, 7
            s_lshl3_add_u32 s22, s17, s22
            s_lshl2_add_u32 s22, s22, s31
            s_lshl1_add_u32 s22, s18, s22
            s_lshl_b32 s22, s22, 10
            v_lshl_add_u32 v10, v4, 7, s22"""
    if pf3n:
        setup["pf3"] = """s_lshl2_add_u32 s22, s17, s31
            s_add_u32 s22, s22, s18
            s_lshl_b32 s22, s22, 11
            s_addk_i32 s22, 384
            v_and_b32 v12, 3, v0
            v_lshl_add_u32 v19, v12, 9, s22
            v_and_b32 v13, 12, v0
            v_lshl_add_u32 v19, v13, 14, v19"""
    if not any(it[0] == "pf3" for it in stream): del setup["pf3"]
    assert stream[0] == ("w", 0, 0)
    setup_after = {1: "x", 3: "xt", 4: "pfw", (5 if pf3n else 9): "pf3", 10: "st"}
    def issue(n):
        it = stream[n]
        assert it[0] not in setup
        if it[0] == "xt":
            a(f"s_add_u32 m0, s5, {XB + 128 + 8*PB}\ns_mov_b64 exec, 0xff\nbuffer_load_dwordx4 v8, s[8:11], 0 offen lds\ns_mov_b64 exec, -1")
        elif it[0] == "x":
            c, i = it[1], it[2]
            v, o = ("v3", 0) if i == 0 else ("v7", (i-1)*2048)
            if xr and c & 1: v, o = ("v21" if i == 0 else "v22"), o - 128
            a(f"s_add_u32 m0, s23, {XC + XBASE[c] + (6 - 2*i)*PB}\ns_movk_i32 s22, {c*128 + o}\nbuffer_load_dwordx4 {v}, s[8:11], s22 offen {xfl}lds")
        elif it[0] == "w":
            s, tap = it[1], it[2]
            odd = xr and s & 4
            if n: a(f"s_add_u32 m0, s21, {cell[it]*CELL}\ns_mov_b32 s22, {tap*262144 + (s - 4 if odd else s)*16384}")
            a(f"buffer_load_dwordx4 {'v20' if odd else 'v5'}, s[12:15], {'s22' if n else 0} offen {wfl}lds")
        else:
            if a.lines[-1].strip() == "s_mov_b64 exec, -1": a.lines.pop()
            same = stream[n-1] == ("xt",) and it[1] == 0xff
            va = "v10" if it[0] == "pfw" else "v19"
            if pflds: a(f"s_mov_b32 m0, {OB}\ns_mov_b64 exec, {hex(it[1])}\nbuffer_load_dword {va}, s[12:15], 0 offen lds\ns_mov_b64 exec, -1")
            else: a(("" if same else f"s_mov_b64 exec, {hex(it[1])}") + f"\nbuffer_load_dword v11, {va}, s[12:15], 0 offen\ns_mov_b64 exec, -1")
        if setup_after.get(n+1) in setup: a(setup.pop(setup_after[n+1]))
    nxt, log = 0, []
    for b in range(NB):
        budget = nb0 + (max(bslot[b], -8)*16 + 128)/rate
        for (s0, n0_), (s1, n1_) in zip(sched, sched[1:]):
            if s0 <= bslot[b] <= s1: budget = n0_ + (n1_ - n0_)*(bslot[b] - s0)/(s1 - s0)
        want = n0 if b == 0 else min(len(stream), max(bpos[b] + 1 + (lamin if bslot[b] < lasw else lamin2), int(budget)))
        while nxt < want:
            it = stream[nxt]
            if it[0] == "w":
                n = wseq.index(it)
                if n >= NC and cell_free_at.get(wseq[n-NC], 99) > b-1: break
            if it[0] == "x" and it[1] == 3 and st["xdead"] > b-1: break
            issue(nxt); nxt += 1
        assert nxt > bpos[b], (b, nxt)
        log.append(nxt - bpos[b] - 1)
        if fine and b == 0:
            for q in range(min(len(stream), 13*fine)):
                while nxt < min(len(stream), q + 1 + lamin): issue(nxt); nxt += 1
                a(f"s_waitcnt vmcnt({nxt-1-q})")
                if q % fine == fine-1: a.stamp(3 + q//fine)
            a.dump_stamps(va=20)
            a("s_endpgm\nL_cpro:")
            a.dump_stamps(va=80)
            a("L_end:\ns_endpgm")
            a.write(name + ".s"); build(name + ".s", name + ".co")
            return f"{name}.co:256:512:{LDS}:4:{a.nstamps}:0"
        a(f"s_waitcnt vmcnt({nxt - bpos[b] - 1})\ns_barrier")
    assert nxt == len(stream) and not setup
    if verbose: print("lookahead", log, "bpos", bpos, len(stream))
    if entry == 3: a("s_setprio 0")
    a("; ---- stores: waves 0,1 take even tiles, waves 2,3 odd tiles" + ("; one barrier publishes a pair of staged tiles" if allbar else "; a tile is ready once no marker is left"))
    def store(i): return f"buffer_store_dwordx4 v[{32+4*i}:{35+4*i}], v{17 + i//2}, s[24:27], 0 offen offset:{(i%2)*2048} {stflags}"
    def read(i): return f"ds_read_b128 v[{32+4*i}:{35+4*i}], v16 offset:{i*32*OP}\ns_waitcnt lgkmcnt(0)"
    for i in range(4):
        r = 32 + 4*i
        if allbar or (i == 3 and lastbar == 1):
            if i in skipbar: continue
            grp = [i]
            while grp[0]-1 in skipbar: grp.insert(0, grp[0]-1)
            a("s_barrier")
            for g_ in grp:
                if OP % 16: a(f"ds_read_b64 v[{32+4*g_}:{33+4*g_}], v16 offset:{g_*32*OP}\nds_read_b64 v[{34+4*g_}:{35+4*g_}], v16 offset:{g_*32*OP+8}")
                else: a(read(g_).split("\n")[0])
            for n_, g_ in enumerate(grp): a(f"s_waitcnt lgkmcnt({len(grp)-1-n_})\n{store(g_)}")
            continue
        if i == 3:
            a(f"s_cmp_lt_u32 s31, 2\ns_cbranch_scc1 L_poll3\ns_barrier\n{read(3)}\n{store(3)}\n{'s_branch L_done' if stamps else 's_endpgm'}")
        a(f"""L_poll{i}:
        {read(i)}
        v_cmp_eq_u32 vcc, s4, v{r}
        v_cmp_eq_u32 s[6:7], s4, v{r+1}
        v_cmp_eq_u32 s[32:33], s4, v{r+2}
        v_cmp_eq_u32 s[34:35], s4, v{r+3}
        s_or_b64 vcc, vcc, s[6:7]
        s_or_b64 s[32:33], s[32:33], s[34:35]
        s_or_b64 vcc, vcc, s[32:33]
        s_cbranch_scc1 L_poll{i}
        {store(i)}""")
    if lastbar == 2: a("s_barrier")
    if stamps:
        a("L_done:"); a.stamp(1); a("s_waitcnt vmcnt(0)"); a.stamp(2)
    nl = a.nstamps
    if stamps: a("s_branch L_ldump")
    else: a("s_endpgm")
    a(".p2align 12\nL_cpro:")
    start = len(a.lines)
    PA = f"""
    v_bfe_u32 v14, v0, 4, 2
    s_bfe_u32 s3, s3, 0x20006
    v_and_b32 v12, 1, v0
    v_mul_u32_u24 v12, 1088, v12
    v_sub_u32 v12, {XB + 1088}, v12
    v_bfe_u32 v10, v0, 1, 3
    v_and_b32 v9, 2, v10
    v_xor_b32 v9, v9, v14
    v_lshl_add_u32 v9, v10, 3, v9
    v_lshl_add_u32 v2, v9, 4, v12                   ; x fragments 0..7
    v_bfe_u32 v13, v0, 2, 2
    v_lshl_add_u32 v4, v14, 3, v13
    v_lshlrev_b32 v4, 8, v4
    v_xor_b32 v13, s3, v13
    v_lshl_add_u32 v4, v13, 5, v4
    v_and_b32 v13, 19, v0
    v_lshl_add_u32 v4, v13, 3, v4
    v_xor_b32 v6, 0x80, v4                          ; g columns
    s_setprio 1
    s_waitcnt lgkmcnt(0)
    """
    PBX = f"""
    v_add_u32 v10, 1, v10
    v_and_b32 v9, 2, v10
    v_xor_b32 v9, v9, v14
    v_lshl_add_u32 v9, v10, 3, v9
    v_lshl_add_u32 v3, v9, 4, v12
    v_add_u32 v5, {12*CELL}, v4                      ; cells 12..21
    v_xor_b32 v7, 0x80, v5
    v_and_b32 v15, 15, v0
    v_mul_u32_u24 v15, {OP}, v15
    s_lshl_b32 s21, s3, 5
    s_add_u32 s21, s21, {OB}
    v_lshl_add_u32 v15, v14, 3, v15
    v_add_u32 v15, s21, v15
    s_mov_b32 s28, 0xc038aa3b                       ; -2 log2(e)
    s_mov_b32 s29, 0xbfb8aa3b                       ; -log2(e)
    s_mov_b32 s30, 0x30800000                       ; K
    s_mov_b32 s31, 0x31000000                       ; 2K
    s_cmp_eq_u32 0, 1
    """
    if split: a(PA)
    else:
        a(f"""
        v_bfe_u32 v14, v0, 4, 2
        v_and_b32 v15, 15, v0
        v_mul_u32_u24 v15, {OP}, v15
        s_lshr_b32 s21, s3, 1
        s_add_u32 s21, s21, {OB - 128}
        v_lshl_add_u32 v15, v14, 3, v15
        v_add_u32 v15, s21, v15
        """)
        if not allbar: a(f"v_mov_b32 v{SEN}, 0x40004000\nv_mov_b32 v{SEN+1}, 0x40004000")
        for jj in range(0 if allbar else 5 + lastbar): a(f"ds_write_b64 v15, v[{SEN}:{SEN+1}] offset:{jj*16*OP}")
        a(f"""
        s_bfe_u32 s3, s3, 0x20006
        v_and_b32 v12, 1, v0
        v_mul_u32_u24 v12, 1088, v12
        v_sub_u32 v12, {XB + 1088}, v12
        v_bfe_u32 v13, v0, 1, 3
        v_and_b32 v9, 2, v13
        v_xor_b32 v9, v9, v14
        v_lshl_add_u32 v9, v13, 3, v9
        v_lshl_add_u32 v2, v9, 4, v12                   ; x fragments 0..7
        v_add_u32 v13, 1, v13
        v_and_b32 v9, 2, v13
        v_xor_b32 v9, v9, v14
        v_lshl_add_u32 v9, v13, 3, v9
        v_lshl_add_u32 v3, v9, 4, v12
        v_bfe_u32 v13, v0, 2, 2
        v_lshl_add_u32 v4, v14, 3, v13
        v_lshlrev_b32 v4, 8, v4
        v_xor_b32 v13, s3, v13
        v_lshl_add_u32 v4, v13, 5, v4
        v_bfe_u32 v13, v0, 4, 1
        v_lshl_add_u32 v4, v13, 7, v4
        v_and_b32 v13, 3, v0
        v_lshl_add_u32 v4, v13, 3, v4
        v_add_u32 v5, {12*CELL}, v4
        v_xor_b32 v6, 0x80, v4                          ; g columns
        v_xor_b32 v7, 0x80, v5
        s_mov_b32 s28, 0xc038aa3b                       ; -2 log2(e)
        s_mov_b32 s29, 0xbfb8aa3b                       ; -log2(e)
        s_mov_b32 s30, 0x30800000                       ; K
        s_mov_b32 s31, 0x31000000                       ; 2K
        {"" if entry in (5, 6) else "s_setprio 1"}
        s_cmp_eq_u32 0, 1
        s_waitcnt lgkmcnt(0)
        """)
    a.lines.append("@MAIN")
    if stamps:
        for i in range(14): a.nstamps = max(a.nstamps, 14)
        a.dump_stamps(va=80)
        a("s_endpgm\nL_ldump:")
        a.nstamps = nl
        a.dump_stamps(va=20)
    a("L_end:\ns_endpgm")
    head, tail = a.lines[:a.lines.index("@MAIN")], a.lines[a.lines.index("@MAIN")+1:]
    def assemble(pad_at):
        a.lines = list(head)
        for i, l in enumerate(C):
            if l == "STAMPB": a(PBX)
            elif l.startswith("STAMP"): a.stamp(int(l[5:]))
            else: a(l)
            if i in pad_at and not jitter: a(f"L_pad{pad_at.index(i)}:\ns_cbranch_scc1 L_cpro")
        a.lines += tail
    PRO = (228 if split else 260 if allbar else 316 + 8*lastbar) - (4 if entry in (5, 6) else 0)
    nbytes, pad_at = PRO, []
    for i, l in enumerate(C):
        nbytes += 16 if l.startswith("STAMP") else 0 if l.startswith(";") else isize(l)
        q = len(pad_at)
        if q < len(pads) and nbytes >= pads[q] and l.startswith("v_mfma") and (C[i+1].startswith("v_") or (q == 0 and nbytes >= pads[q] + 32)):
            pad_at.append(i); nbytes += 4
    assert len(pad_at) == len(pads)
    if widen:
        phase, kinds = widen
        nb, cand = PRO, None
        for i, l in enumerate(C):
            if l.startswith(";"): continue
            if l.startswith(kinds) and isize(l) == 8 and nb % 8 != phase and cand is not None:
                C[cand] = re.sub(r"^(v_\w+_f32) ", r"\1_e64 ", C[cand]); nb += 4
            if l.startswith(kinds) and isize(l) == 8: cand = None
            if l.startswith("v_") and isize(l) == 4: cand = i
            nb += 16 if l.startswith("STAMP") else isize(l)
            if i in pad_at and not jitter: nb += 4
    assemble(pad_at)
    if jitter:
        out, nb = [], 0
        for l in a.lines:
            if l.strip().startswith("s_cmpk_ge_u32 s3, 256"):
                out += ["    s_lshl_b32 s99, s2, 9", "    s_add_u32 s99, s99, s3", f"    s_add_u32 s99, s99, {jitter*7919}", "    s_mul_i32 s99, s99, 0x9e3779b1", "    s_lshr_b32 s98, s99, 15", "    s_xor_b32 s99, s99, s98", "    s_mul_i32 s99, s99, 0x85ebca6b", "    s_mul_i32 s98, s99, 0xc2b2ae35", "    s_and_b32 s99, s99, s98"]
            pre = l.strip() == "s_barrier" or l.strip().startswith("ds_write_b64")
            j = [f"    s_bitcmp1_b32 s99, {nb % 32}", f"    s_cbranch_scc0 L_j{nb}", f"    s_sleep {3 + nb % 9}", f"L_j{nb}:"]
            if pre and jitter % 2: out += j; nb += 1
            out.append(l)
            if pre and not jitter % 2: out += j; nb += 1
        a.lines = out
    a.write(name + ".s")
    build(name + ".s", name + ".co")
    return f"{name}.co:256:512:{LDS}:4:{nl}:{14 if stamps else 0}"

def batch(cfgs, modes=(6,), reps=48, extra=()):
    args = list(extra); files = ["work/runner2", "work/run.sh", "work/fam.py", "work/thrash.co"] + ["work/" + e.split(":")[0] for e in extra]
    for name, kw in cfgs:
        kw = dict(kw); kw.setdefault("stamps", True)
        args.append(gen(name, **kw)); files.append(f"work/{name}.co")
    cmds = [f"BRIEF=1 ./runner2 {reps} {m} 0.1 " + " ".join(args) for m in modes]
    open("run.sh", "w").write("cd work\nrocm-smi --showuniqueid 2>/dev/null | grep 'Unique ID:' | sed 's,^,mode=,'\n" + "\n".join(cmds) + "\n")
    print(json.dumps(files))

G2 = dict(xpos=((2,)*4, (12,)*4, (12,12,24,24), (36,)*4), sched=[(70,37),(130,44),(170,53),(181,55),(230,64),(250,67)], pf3=[(24,0x7000)])
G4 = dict(G2, entry=3, n0=13)
D1 = [(j,6) for j in range(2,8)] + [(7,5)]
G5 = dict(G4, tailplan="auto", lastbar=1, gap6=(5,330), defer=D1, edelay=3)
G6 = dict(G5, allbar=4, gap6=(5,400))
G7 = dict(G6, entry=5)
G8 = dict(G7, allbar=(2,5,4))
def SW(a, b, c, e=39): return [(70,37),(85,e),(127,a),(175,b),(223,c),(240,67)]
G9 = dict(G8, nobar=(20,22,26,28,32,34), sched=SW(45,55,62))
G10 = dict(G9, sched=SW(44,55,62,38))
def SW2(a, b, c, e, n): return [(70,e-1),(85,e),(127,a),(175,b),(223,c),(240,n)]
G11 = dict(G10, pf3=[], sched=SW2(43,54,61,38,66))
G12 = dict(G11, pfrow=True, pfw=((2,0xff),))
X4 = lambda a,b,c: ((2,)*4,(a,)*4,(b,)*4,(c,)*4)
D3 = [(j,6) for j in range(2,8)] + [(7,5),(6,5)]
B3 = dict(G10, xpos=X4(12,12,30), sched=[(70,38),(85,40),(127,49),(175,57),(223,65),(230,67)], defer=D3, allbar=(3,3,3))
B3b = dict(B3, sched=[(70,38),(85,39),(127,47),(175,56),(223,64),(233,67)])
G13 = dict(G10, pflds=True)
G14 = dict(G13, xbar=((0,0),(0,1),(0,2),(0,3),(3,3)), bearly=((3,3),240), sched=[(70,37),(85,38),(127,44),(175,55),(223,62),(240,65),(250,67)])
G15 = dict(G14, allbar=(2,2,4))
FINAL0 = dict(G14, allbar=(2,2,3))
FINAL = dict(FINAL0, trim=True, widen=(0, ("v_pk",)))
if __name__ == "__main__":
    gen("final", **dict(FINAL, verbose=True))
```

```python
import sys, json, re
from asmlib import Asm
from build import build

KN = "standalone__autoregressive_conv_wavernn__speech_kernel"
PB = 2112
XP = 8*PB + 128
NC = 22
CELL = 4096
XB = NC*CELL
XBASE = [0, XP + 128, 2*XP + 128, 128]
OP = 144
OB = XB + 3*XP + 128
LDS = OB + 128*OP
ACC = 16
POOL0, POOL1 = 80, 248
SEN = 248
TRANS = ("v_exp_f32", "v_rcp_f32", "v_exp_f32_e64", "v_rcp_f32_e64")

def isize(l):
    return 4 if l.split()[0] in ("s_waitcnt", "s_barrier", "s_nop", "v_mul_f32", "v_exp_f32", "v_rcp_f32", "v_sub_f32") else 8
def cost(l): return 8 if l.split()[0] in TRANS else 4

def epi_groups(j):
    F = [ACC+8*j+i for i in range(4)]; G = [f+4 for f in F]
    p2 = lambda r: f"v[{r}:{r+1}]"
    e = (0, 2)
    same = lambda ops: (ops, ops)
    return [
        ([f"v_mul_f32 v{f}, s28, v{f}" for f in F], [f"v_pk_mul_f32 {p2(F[o])}, {p2(F[o])}, s[28:29] op_sel_hi:[1,0]" for o in e]),
        ([f"v_mul_f32 v{g}, s29, v{g}" for g in G], [f"v_pk_mul_f32 {p2(G[o])}, {p2(G[o])}, s[28:29] op_sel:[0,1] op_sel_hi:[1,1]" for o in e]),
        same([f"v_exp_f32 v{f}, v{f}" for f in F]),
        same([f"v_exp_f32 v{g}, v{g}" for g in G]),
        ([f"v_fma_f32 v{f}, v{f}, s30, s30 clamp" for f in F], [f"v_pk_fma_f32 {p2(F[o])}, {p2(F[o])}, s[30:31], s[30:31] op_sel_hi:[1,0,0] clamp" for o in e]),
        ([f"v_fma_f32 v{g}, v{f}, v{g}, v{f}" for f, g in zip(F, G)], [f"v_pk_fma_f32 {p2(G[o])}, {p2(F[o])}, {p2(G[o])}, {p2(F[o])}" for o in e]),
        same([f"v_rcp_f32 v{g}, v{g}" for g in G]),
        ([f"v_sub_f32 v{f}, s31, v{f}" for f in F], [f"v_pk_add_f32 {p2(F[o])}, {p2(F[o])}, s[30:31] op_sel:[0,1] op_sel_hi:[1,1] neg_lo:[1,0] neg_hi:[1,0]" for o in e]),
        ([f"v_mul_f32 v{f}, v{f}, v{g}" for f, g in zip(F, G)], [f"v_pk_mul_f32 {p2(F[o])}, {p2(F[o])}, {p2(G[o])}" for o in e]),
        same([f"v_cvt_pk_bf16_f32 v{F[o//2]}, v{F[o]}, v{F[o+1]}" for o in e]),
        same([f"ds_write_b64 v15, {p2(F[0])} offset:{j*16*OP}"]),
    ]

DEPS = {0: (), 1: (), 2: (0,), 3: (1,), 4: (2,), 5: (4, 3), 6: (5,), 7: (5,), 8: (7, 6), 9: (8,), 10: (9,)}
PACK = (0, 1, 4, 5, 7, 8)
NOPS = [4]*9 + [2, 1]
OCOST = [4, 4, 8, 8, 4, 4, 8, 4, 4, 4, 16]

def plan_tail(N, avail2, prefix, gap6=0, beam=300):
    avail = {j: min(avail2[j]) for j in range(8)}
    now = [0]
    def ready(S, j, s): return S[j][s] < NOPS[s] and (s > 1 or avail2[j][s] <= now[0]) and all(S[j][d] == NOPS[d] for d in DEPS[s])
    def remaining(S):
        return sum((NOPS[s] - S[j][s] + 1)//2*4 if s in PACK else (NOPS[s] - S[j][s])*(17 if s == 10 else OCOST[s]) for j in range(8) for s in range(11))
    def fill(S, k, t, limit, out, plain_ok):
        tiles = [j for j in range(8) if avail[j] <= k]
        while True:
            pick = None
            for cls in ((9, 6, 2, 3), PACK if plain_ok else ()):
                for j in tiles:
                    for s in cls:
                        if ready(S, j, s) and max(t, 8) + OCOST[s] <= limit: pick = (j, s); break
                    if pick: break
                if pick: break
            if not pick: return t
            j, s = pick
            out.append((j, s, S[j][s], False)); S[j][s] += 1; t = max(t, 8) + OCOST[s]
    def step(S0, k, mode):
        S = [list(r) for r in S0]; out = []; t = prefix[k]
        tiles = [j for j in range(8) if avail[j] <= k]
        if mode & 2:
            w = [j for j in tiles if ready(S, j, 10)]
            if not w or t > 8: return None
            out.append((w[0], 10, 0, False)); S[w[0]][10] = 1; t += 16
        if not mode & 1:
            t = fill(S, k, t, 16, out, True)
        else:
            t = fill(S, k, t, 28 + 8*(mode >> 2), out, False)
            t = fill(S, k, t, 28, out, True)
            n = len(out); t0 = max(t, 28)
            again = True
            while again:
                again = False
                for s in (0, 1, 7, 8, 4, 5):
                    for j in tiles:
                        while ready(S, j, s):
                            pk = S[j][s] % 2 == 0
                            out.append((j, s, S[j][s], pk)); S[j][s] += 2 if pk else 1; t0 += 4; again = True
            if len(out) == n: return None
            t = t0
        return tuple(map(tuple, S)), max(16, t), out
    start = min(avail.values())
    states = {tuple((0,)*11 for _ in range(8)): (0, [])}
    for k in range(start, N-1):
        nxt = {}; now[0] = k
        for S, (T, plan) in states.items():
            for mode in (0, 1, 2, 3, 5, 7, 9):
                r = step(S, k, mode)
                if r is None: continue
                S2, dt, out = r
                if S2 not in nxt or nxt[S2][0] > T + dt: nxt[S2] = (T + dt, plan + [out])
        states = dict(sorted(nxt.items(), key=lambda e: e[1][0] + remaining(e[0]))[:beam])
    def final(S0):
        S = [list(r) for r in S0]; out = []; t = 4; now[0] = N-1
        w = [j for j in range(7) if ready(S, j, 10)]
        if w: out.append((w[0], 10, 0, False)); S[w[0]][10] = 1; t += 16
        t = fill(S, N-1, t, 32, out, False)
        t = fill(S, N-1, t, 28, out, True)
        t = max(t, 28)
        for j in range(8):
            if j == 7:
                n = max(8 - len(out), (36 - t + 3)//4, 0)
                if n: out.append(("nop", n)); t += 4*n
            for s in range(11):
                while S[j][s] < NOPS[s]:
                    pk = s in PACK and S[j][s] % 2 == 0
                    out.append((j, s, S[j][s], pk)); S[j][s] += 2 if pk else 1
                    t += 4 if pk else 17 if s == 10 else OCOST[s]
        return out, t
    def late6(plan, rest):
        c = lambda e: 4*e[1] if e[0] == "nop" else 4 if e[3] else OCOST[e[1]]
        d = 0
        for sl in [rest] + plan[::-1]:
            for e in sl[::-1]:
                if e[:2] == (gap6[0], 10): return max(0, gap6[1] - d)
                d += c(e)
            d += 8
        return 0
    cands = [(T + final(S)[1], plan, final(S)[0]) for S, (T, plan) in states.items()]
    T, plan, rest = min(cands, key=lambda e: e[0] + late6(e[1], e[2]))
    return {start + i: p for i, p in enumerate(plan)}, rest, T - 16*(N - start)

_plans = {}
def cached_plan(N, av, prefix, gap6):
    lo = min(min(v) for v in av.values())
    key = (tuple(av.items()), tuple(prefix[k] for k in range(lo, N)), gap6)
    if key not in _plans: _plans[key] = plan_tail(N, av, prefix, gap6)
    return _plans[key]

def regs(tok):
    m = re.fullmatch(r"-?v\[(\d+):(\d+)\]", tok)
    if m: return set(range(int(m.group(1)), int(m.group(2))+1))
    m = re.fullmatch(r"-?v(\d+)", tok)
    return {int(m.group(1))} if m else set()

def check_hazards(C):
    L = [l for l in C if not l.startswith(("STAMP", ";"))]
    ops = [[t.strip(",") for t in l.split()[1:]] for l in L]
    states = lambda i: int(L[i].split()[1]) + 1 if L[i].startswith("s_nop") else 1
    for i, l in enumerate(L):
        op = l.split()[0]
        if op.startswith("v_mfma"): need = 8
        elif op in TRANS: need = 1
        else: continue
        D = regs(ops[i][0])
        n, j = 0, i + 1
        while n < need and j < len(L):
            o2 = L[j].split()[0]
            touched = set().union(*[regs(t) for t in ops[j]]) if ops[j] else set()
            if o2.startswith("v_mfma"):
                assert not ((regs(ops[j][1]) | regs(ops[j][2])) & D), (i, l, L[j])
                c = regs(ops[j][3]) | regs(ops[j][0])
                assert not (c & D) or (c == D and need == 8), (i, l, L[j])
            elif not (need == 1 and o2 in TRANS):
                assert not (touched & D), ("hazard", i, l, L[j], n)
            n += states(j); j += 1
    lastuse, k = {}, 0
    for i, l in enumerate(L):
        if l.startswith("v_mfma"):
            k += 1
            for r_ in regs(ops[i][1]) | regs(ops[i][2]): lastuse[r_] = k
        elif l.startswith("ds_read"):
            assert all(k - lastuse.get(r_, -9) >= 2 for r_ in regs(ops[i][0]))

def make_stream(xpos, xt_at=2, pfw=((2, 0x77),), pf3=(), xbar=((0,0),(0,1),(0,2),(0,3)), nobar=()):
    ws = [("w", 2*S+h, t) for S in range(8) for t in range(3) for h in range(2)]
    ins = {}
    for c in range(4):
        for i in range(4): ins.setdefault(xpos[c][i], []).append(("x", c, i))
    ins.setdefault(xt_at, []).append(("xt",))
    for at, mask in pfw: ins.setdefault(at, []).append(("pfw", mask))
    for at, mask in pf3: ins.setdefault(at, []).append(("pf3", mask))
    st = []
    for n in range(49):
        st += ins.get(n, [])
        if n < 48: st.append(ws[n])
    first_needed = max(st.index(ws[1]), st.index(("x", 0, 0)))
    bp = set(st.index(ws[n-1]) for n in range(2, 49, 2) if n not in nobar) | set(st.index(("x",)+e) for e in xbar)
    bp.add(max(i for i, it in enumerate(st) if it[0] in ("w", "x", "xt")))
    return st, sorted(p for p in bp if p >= first_needed)

def mfma_order(nw, m, defer=None):
    deferred = [(j, 7) for j in range(1, 8)] + [(j, S) for S in (6, 5, 4) for j in range(7, 0, -1)][:m]
    if defer: deferred = [(j, 7) for j in range(1, 8)] + list(defer)
    out, flip = [], [0]
    def unit(j, Ss):
        seq = [(S, t) for S in Ss for t in range(3)]
        ns = (0, 1) if flip[0] else (1, 0)
        flip[0] ^= 1
        return [(j, S, t, ns[0]) for S, t in seq] + [(j, S, t, ns[1]) for S, t in reversed(seq)]
    for S in range(8):
        js = [j for j in range(8) if (j, S) not in deferred]
        if S < nw or S == 7:
            for t in range(3):
                if S == 0 and t == 0: out += [(j, S, t, n ^ (j & 1)) for j in js for n in (1, 0)]
                else: out += [(j, S, t, n) for n in (1, 0) for j in js]
        else:
            for j in js: out += unit(j, [S])
    for j in range(1, 8):
        out += unit(j, sorted(S for jj, S in deferred if jj == j))
    assert len(out) == 384 and len(set(out)) == 384
    return out

HEADER = """
;
;   waves 4-7  compute : 16 channels each, 8 row tiles, v_mfma_f32_16x16x32_bf16 (A = w^T, B = x^T)
; Every hand-off is vmcnt / lgkmcnt wait -> s_barrier -> read; both roles execute the same number of barriers.
"""

def gen(name, xpos, sched, nw=1, m=7, n0=12, nb0=15, lamin=11, lamin2=4, lasw=70, rate=70, lead=10, lead0=7, look=70, safe=9,
        stamps=False, stflags="sc1", fine=0, jitter=0, verbose=False, xr=False, entry=0, tailplan=None, edelay=3, gap6=(6, 0), lastbar=2, allbar=0, split=False, skipbar=(), align=0, trim=False, widen=None, bearly=None, pf3n=False, pflds=False, pfrow=False, pads=(4096,), op=144, defer=None, lead1=None, xfl='', wfl='',
        markq=(0, 2, 4, 6, 8, 10, 12, 13, 14, 15, 16), **skw):
    args = dict(locals()); args.update(args.pop("skw"))
    a = Asm(256, 512, LDS, vgpr=256 if (stamps or not allbar) else 248, sgpr=102 if (stamps or jitter) else 32 if allbar else 40)
    a.header = HEADER
    global OP
    OP = op
    stream, bpos = make_stream(xpos, **skw)
    NB = len(bpos)
    pos = {it: i for i, it in enumerate(stream)}
    wseq = [it for it in stream if it[0] == "w"]
    cell = {it: i % NC for i, it in enumerate(wseq)}
    order = mfma_order(nw, m, defer)
    mf = [(ACC+8*j+4*n, j, ("w", S, t, n), ("x", S, j+t)) for j, S, t, n in order]
    N = len(mf)
    tile_end, first, last = {}, {}, {}
    for k, (A, j, wf, xf) in enumerate(mf):
        tile_end[j] = k
        for fr in (wf, xf):
            first.setdefault(fr, k); last[fr] = k
    witems = lambda fr: [("w", 2*fr[1], fr[2]), ("w", 2*fr[1]+1, fr[2])]
    def need_pos(fr):
        if fr[0] == "w": return max(pos[i] for i in witems(fr))
        p = pos[("x", fr[1]//2, (fr[2] % 8)//2)]
        return max(p, pos[("xt",)]) if fr[2] == 8 else p
    need_bar = {fr: min(b for b in range(NB) if bpos[b] >= need_pos(fr)) for fr in first}
    ops = []
    for fr in sorted(first, key=lambda f: (first[f], f[0])):
        ops += [(fr, 0)] if fr[0] == "x" else [(fr, 0), (fr, 1)]
    latest, taken = {}, set()
    def place(dl):
        while dl in taken: dl -= 1
        taken.add(dl); return dl
    bslot = [0]*NB
    for b in range(NB-1, -1, -1):
        mine = [o for o in ops if need_bar[o[0]] == b]
        for op in sorted(mine, key=lambda o: (-first[o[0]], -o[1])): latest[op] = place(first[op[0]] - (lead0 if first[op[0]] < 24 else lead1 if (lead1 and (first[op[0]] < 110 or first[op[0]] > 287)) else lead))
        cap = [bearly[1] + 1] if bearly and bpos[b] == pos[("x",) + bearly[0]] else []
        bslot[b] = place(min([latest[o] for o in mine] + cap + ([bslot[b+1]] if b+1 < NB else [])) - 1)
    C = []
    free = list(range(POOL0, POOL1, 4))
    reg = {}
    pending = sorted(ops, key=lambda o: latest[o])
    issued = []
    st = {"done": 0, "bar": -1}
    cell_free_at, wfr_of = {}, {}
    for fr in first:
        if fr[0] == "w":
            for it in witems(fr): wfr_of.setdefault(it, []).append(fr)
    def emit_read(op, k):
        fr, h = op
        if fr not in reg: reg[fr] = free.pop(0)
        r = reg[fr]
        if fr[0] == "x":
            S, jj = fr[1], fr[2]
            C.append(f"ds_read_b128 v[{r}:{r+3}], v{2 + jj//8} offset:{XBASE[S//2] + (S%2)*64 + (7 - jj%8)*PB}")
        else:
            off = cell[witems(fr)[0]]*CELL
            base = 4 + 2*fr[3]
            if off >= 12*CELL: off -= 12*CELL; base += 1
            C.append(f"ds_read_b64_tr_b16 v[{r+2*h}:{r+2*h+1}], v{base} offset:{off+1024*h}")
        pending.remove(op); issued.append((op, k))
    def emit_wait(frs, k):
        idx = max(i for i, (o, s) in enumerate(issued) if o[0] in frs) + 1
        if idx <= st["done"]: return 0
        while idx < len(issued) and issued[idx][1] <= k - safe: idx += 1
        n = min(15, len(issued) - idx)
        C.append(f"s_waitcnt lgkmcnt({n})")
        st["done"] = len(issued) - n
        return 4
    def emit_bar(b):
        C.append("s_barrier"); st["bar"] = b
        dn = set(o for o, s in issued[:st["done"]])
        if "xdead" not in st and all((fr, 0) in dn for fr in first if fr[0] == "x" and fr[1] < 2): st["xdead"] = b
        for it, frs in wfr_of.items():
            if it not in cell_free_at and all((fr, h) in dn for fr in frs for h in (0, 1)): cell_free_at[it] = b
    for b in range(NB):
        if bslot[b] >= 0: break
        emit_bar(b)
        for op in sorted([o for o in pending if latest[o] < 0 and need_bar[o[0]] == b], key=lambda o: (first[o[0]], o[0][0], o[1])): emit_read(op, -1)
        if b == 0 and split: C.append("STAMPB")
    emit_wait(mf[0][2:], -1)
    epi, seen, est = [], set(), 0
    prefix, obar = {}, []
    def emit_epi(e, k):
        if e[0] == "nop": C.append(f"s_nop {e[1]-1}"); return
        j, s_, i, pk = e
        t = epi_groups(j)[s_][1][i//2] if pk else epi_groups(j)[s_][0][i]
        prev = C[-1].split()
        if prev[0] in TRANS and t.split()[0] not in TRANS and regs(prev[1].strip(",")) & set().union(*[regs(x.strip(",")) for x in t.split()[1:]]):
            C.append("s_nop 0")
        C.append(t)
        if s_ == 10:
            issued.append(((("o", j), 0), k))
            if allbar and j % 2 and j < 7 and j//2 not in skipbar: obar.append([k + (allbar[j//2] if isinstance(allbar, tuple) else allbar), j, 0])
    marks = [max(0, int(N*q/16) - 1) for q in markq]
    for k, (A, j, wf, xf) in enumerate(mf):
        if k <= tile_end[0]:
            if k == 0 or order[k][1] != order[k-1][1]: C.append(f"; channels {32*order[k][1]}..{32*order[k][1]+31}")
        elif order[k][0] != order[k-1][0]: C.append(f"; remaining steps of row tile {j}, activation of finished tiles in the MFMA shadows")
        src = f"v[{A}:{A+3}]" if A in seen else "0"
        seen.add(A)
        C.append(f"v_mfma_f32_16x16x32_bf16 v[{A}:{A+3}], v[{reg[wf]}:{reg[wf]+3}], v[{reg[xf]}:{reg[xf]+3}], {src}")
        for fr in (wf, xf):
            if last[fr] == k: free.append(reg[fr])
        used = 4
        if k+1 < N:
            assert not [o for o in pending if o[0] in mf[k+1][2:]]
            used += emit_wait(mf[k+1][2:], k)
        for jj in range(8):
            if tailplan is None and tile_end[jj] + 3 == k: epi += [[list(p), q, False] for p, q in epi_groups(jj)]
        intail = k >= tile_end[0] + edelay
        b = st["bar"] + 1
        if b < NB and bslot[b] <= k:
            emit_bar(b); used += 8
        elif epi and epi[0][0][0].startswith("ds_write") and used <= 8:
            C.append(epi.pop(0)[0][0]); issued.append(((("o", k), 0), k)); used += 8
        elif used <= 8:
            cand = [o for o in pending if need_bar[o[0]] <= st["bar"] and (o[0] in reg or len(free) > 2) and latest[o] - k <= (2 if intail else look)]
            if cand: emit_read(cand[0], k); used += 8
        prefix[k] = used
        if isinstance(tailplan, tuple):
            mine = tailplan[0].get(k, [])
            if obar and obar[0][0] <= k and used == 4 and not any(e[1] == 10 for e in mine):
                if obar[0][2] == 0:
                    idx = max(i for i, (o, s_) in enumerate(issued) if o[0] == ("o", obar[0][1])) + 1
                    n = min(15, len(issued) - idx)
                    C.append(f"s_waitcnt lgkmcnt({n})"); st["done"] = max(st["done"], len(issued) - n); obar[0][2] = 1
                else:
                    C.append("s_barrier"); obar.pop(0)
            for e in mine: emit_epi(e, k)
        if not epi and tile_end[0] <= k < tile_end[0] + edelay and used <= 12:
            C.append(f"s_nop {(16 - used)//4 - 1}"); used = 16
        used = max(used, 8)
        while epi and not epi[0][0][0].startswith("ds_write") and used + cost(epi[0][0][0]) <= 16:
            t = epi[0][0].pop(0); epi[0][2] = True
            C.append(t); used += cost(t)
            if not epi[0][0]: epi.pop(0)
        est += max(16, used)
        if stamps and k in marks: C.append(f"STAMP{1 + marks.index(k)}")
    if tailplan == "auto":
        acc_end = {A: k for k, (A, j, wf, xf) in enumerate(mf)}
        lo = tile_end[0] + edelay
        plan = cached_plan(N, {j: tuple(max(lo, acc_end[ACC+8*j+4*n] + edelay) for n in (0, 1)) for j in range(8)}, prefix, gap6)
        if verbose: print("planned exposed cycles", plan[2])
        args["tailplan"] = plan
        return gen(**args)
    rest = []
    if tailplan:
        n_ = len(C)
        for e in tailplan[1]: emit_epi(e, N)
        rest = C[n_:]
    else:
        for p, q, started in epi: rest += p if started else q
        for p, q in epi_groups(7): rest += q
        C += rest
    assert not obar
    C += ["s_waitcnt lgkmcnt(0)", "s_barrier"]
    if stamps: C += ["STAMP12", "STAMP13"]
    assert not pending and st["bar"] == NB-1 and tile_end[7] == N-1
    if align:
        out, odd = [], False
        if align & 1:
            C = [re.sub(r"^(v_(?:mul|exp|rcp|sub)_f32) ", r"\1_e64 ", l) for l in C]
        for i, l in enumerate(C):
            out.append(l)
            if l.startswith((";", "STAMP")): continue
            if isize(l) == 4: odd = not odd
            if align & 2 and odd and C[min(i+1, len(C)-1)].startswith(("v_mfma", ";")) and (l.startswith(("v_mfma", "s_waitcnt")) or (l.startswith("s_barrier") or l.startswith("ds_read")) and C[i-1].startswith("v_mfma")):
                out.append("s_nop 0"); odd = False
        C = out
    check_hazards(C)
    if trim:
        for i in [i for i, l in enumerate(C) if l.startswith("s_nop")][::-1]:
            try: check_hazards(C[:i] + C[i+1:]); del C[i]
            except AssertionError: pass
    if verbose: print("bslot", bslot, "est", est, "rest cyc", sum(map(cost, rest)), "waits", sum(l.startswith("s_waitcnt") for l in C))

    if stamps: a.stamp(0)
    hop = "" if (jitter or fine) else "\n".join(
        f"s_cmpk_ge_u32 s3, {384 if len(pads) == 1 else 448 - 64*q}" + (" "*27 + "; some compute waves pass through the last code page first (instruction cache warm-up)" if q == 0 else "") +
        f"\ns_cbranch_scc1 L_pad{q}" for q in range(len(pads)))
    role = f"{hop}\ns_cmpk_ge_u32 s3, 256\ns_cbranch_scc1 L_cpro"
    if entry == 1: role = f"s_cmpk_lt_u32 s3, 256\ns_cbranch_scc1 L_ld\ns_waitcnt lgkmcnt(0)\n{hop}\ns_branch L_cpro\nL_ld:"
    if entry == 2: role = role.replace("384", "448")
    if entry in (3, 4): role = "s_setprio 2\n" + role
    if entry == 6: role += "\ns_setprio 1"
    a(f"""
    s_load_dwordx2 s[12:13], s[0:1], 8              ; w
    s_load_dwordx2 s[8:9], s[0:1], 0                ; x
    s_load_dwordx2 s[24:25], s[0:1], 16             ; out
    s_cmpk_ge_u32 s2, 256
    v_readfirstlane_b32 s3, v0                      ; wave * 64
    s_cbranch_scc1 L_end
    {role}
    v_lshrrev_b32 v6, 3, v0
    s_and_b32 s18, s2, 0x18
    v_xor_b32 v6, v6, v0
    s_lshl_b32 s18, s18, 4                          ; n * 128 B
    v_bfi_b32 v9, 6, v6, v0
    s_and_b32 s4, s3, 0x80
    v_and_b32 v9, 7, v9
    s_lshl2_add_u32 s22, s4, s18
    v_and_b32 v5, 0xf8, v0
    s_lshl_b32 s21, s3, 4
    v_lshlrev_b32 v5, 6, v5
    s_mov_b32 s14, 786432
    v_lshl_add_u32 v5, v9, 4, v5
    s_mov_b32 s15, 0x20000
    v_xor_b32 v5, s22, v5
    s_mov_b32 m0, s21
    s_lshr_b32 s17, s2, 5
    s_and_b32 s16, s2, 3
    s_lshl3_add_u32 s19, s16, s17
    s_mulk_i32 s19, 125
    s_lshr_b32 s31, s3, 6
    s_add_u32 s20, s19, s31
    s_sub_u32 s20, s20, 4
    s_lshl_b32 s20, s20, 9
    v_bfi_b32 v9, 2, v6, v0
    v_and_b32 v9, 7, v9
    v_lshl_add_u32 v3, v9, 4, s20
    v_and_b32 v9, 56, v0
    v_lshl_add_u32 v3, v9, 10, v3
    v_add_u32 v7, 0x800, v3
    s_bfe_u32 s16, s2, 0x10002
    s_mul_i32 s16, s16, 2048000
    s_mul_i32 s23, s3, 17
    s_lshr_b32 s4, s4, 1
    s_sub_u32 s23, s4, s23
    s_mov_b32 s10, 2048000
    s_mov_b32 s11, 0x20000
    """)
    if xr:
        a("""s_andn2_b32 s36, 0x80, s18                      ; even column tiles swap the chunks of each pair
        s_lshl_b32 s37, s36, 9
        v_add_u32 v5, s37, v5
        v_add_u32 v3, s36, v3
        v_add_u32 v7, s36, v7""".replace("s36", "s7").replace("s37", "s6"))
    if fine: a.stamp(1)
    a("s_waitcnt lgkmcnt(0)")
    if fine: a.stamp(2)
    XC = XB + PB + 1088
    setup = {
        "x": "s_add_u32 s8, s8, s16\ns_addc_u32 s9, s9, 0",
        "xt": f"""s_add_u32 s22, s19, 124
            s_lshl2_add_u32 s22, s22, s31
            s_lshl_b32 s22, s22, 7
            {"s_xor_b32 s22, s22, s7" if xr else ""}
            v_and_b32 v4, 7, v0
            v_lshl_add_u32 v8, v4, 4, s22
            s_mul_i32 s5, s31, {XP}
            s_cmp_eq_u32 s31, 3
            s_cselect_b32 s5, 0, s5
            s_cmp_eq_u32 s31, 0
            s_cselect_b32 s5, -128, s5""",
        "pfw": """s_lshl2_add_u32 s22, s2, s31
            s_lshl_b32 s22, s22, 7
            v_and_b32 v12, 3, v0
            v_lshl_add_u32 v10, v12, 18, s22
            v_and_b32 v13, 4, v0
            v_lshl_add_u32 v10, v13, 15, v10""",
        "pf3": """s_lshr_b32 s22, s2, 3
            s_lshl2_add_u32 s22, s22, s31
            s_lshl_b32 s22, s22, 9
            s_addk_i32 s22, 384
            v_and_b32 v12, 3, v0
            v_lshl_add_u32 v19, v12, 18, s22
            v_and_b32 v13, 12, v0
            v_lshl_add_u32 v19, v13, 14, v19""",
        "st": f"""{"" if allbar else "s_mov_b32 s4, 0x40004000"}
            {"v_xor_b32 v20, 0x10000, v5; v_xor_b32 v21, 0x80, v3; v_xor_b32 v22, 0x80, v7".replace("; ", chr(10)) if xr else ""}
            v_lshrrev_b32 v14, 3, v0
            v_lshlrev_b32 v15, 4, v4
            v_mul_u32_u24 v16, {OP}, v14
            s_mov_b32 s6, {OB}
            v_add3_u32 v16, v16, v15, s6
            v_bfe_u32 v17, v0, 4, 3
            v_and_b32 v14, 1, v14
            v_lshl_add_u32 v17, v17, 4, v14
            v_lshrrev_b32 v14, 7, v0
            v_lshl_add_u32 v17, v14, 1, v17
            v_lshl_add_u32 v17, v17, 9, v15
            v_add_u32 v17, s18, v17
            v_add_u32 v18, 0x1000, v17
            s_lshl_b32 s22, s19, 9
            s_add_u32 s16, s16, s22
            s_mov_b32 s26, 64000
            s_mov_b32 s27, 0x20000
            s_add_u32 s24, s24, s16
            s_addc_u32 s25, s25, 0"""}
    if pfrow:
        setup["pfw"] = """s_and_b32 s22, s2, 7
            s_lshl3_add_u32 s22, s17, s22
            s_lshl2_add_u32 s22, s22, s31
            s_lshl1_add_u32 s22, s18, s22
            s_lshl_b32 s22, s22, 10
            v_lshl_add_u32 v10, v4, 7, s22"""
    if pf3n:
        setup["pf3"] = """s_lshl2_add_u32 s22, s17, s31
            s_add_u32 s22, s22, s18
            s_lshl_b32 s22, s22, 11
            s_addk_i32 s22, 384
            v_and_b32 v12, 3, v0
            v_lshl_add_u32 v19, v12, 9, s22
            v_and_b32 v13, 12, v0
            v_lshl_add_u32 v19, v13, 14, v19"""
    if not any(it[0] == "pf3" for it in stream): del setup["pf3"]
    assert stream[0] == ("w", 0, 0)
    setup_after = {1: "x", 3: "xt", 4: "pfw", (5 if pf3n else 9): "pf3", 10: "st"}
    def issue(n):
        it = stream[n]
        assert it[0] not in setup
        if it[0] == "xt":
            a(f"s_add_u32 m0, s5, {XB + 128 + 8*PB}\ns_mov_b64 exec, 0xff\nbuffer_load_dwordx4 v8, s[8:11], 0 offen lds\ns_mov_b64 exec, -1")
        elif it[0] == "x":
            c, i = it[1], it[2]
            v, o = ("v3", 0) if i == 0 else ("v7", (i-1)*2048)
            if xr and c & 1: v, o = ("v21" if i == 0 else "v22"), o - 128
            a(f"s_add_u32 m0, s23, {XC + XBASE[c] + (6 - 2*i)*PB}\ns_movk_i32 s22, {c*128 + o}\nbuffer_load_dwordx4 {v}, s[8:11], s22 offen {xfl}lds")
        elif it[0] == "w":
            s, tap = it[1], it[2]
            odd = xr and s & 4
            if n: a(f"s_add_u32 m0, s21, {cell[it]*CELL}\ns_mov_b32 s22, {tap*262144 + (s - 4 if odd else s)*16384}")
            a(f"buffer_load_dwordx4 {'v20' if odd else 'v5'}, s[12:15], {'s22' if n else 0} offen {wfl}lds")
        else:
            if a.lines[-1].strip() == "s_mov_b64 exec, -1": a.lines.pop()
            same = stream[n-1] == ("xt",) and it[1] == 0xff
            va = "v10" if it[0] == "pfw" else "v19"
            if pflds: a(f"s_mov_b32 m0, {OB}\ns_mov_b64 exec, {hex(it[1])}\nbuffer_load_dword {va}, s[12:15], 0 offen lds\ns_mov_b64 exec, -1")
            else: a(("" if same else f"s_mov_b64 exec, {hex(it[1])}") + f"\nbuffer_load_dword v11, {va}, s[12:15], 0 offen\ns_mov_b64 exec, -1")
        if setup_after.get(n+1) in setup: a(setup.pop(setup_after[n+1]))
    nxt, log = 0, []
    for b in range(NB):
        budget = nb0 + (max(bslot[b], -8)*16 + 128)/rate
        for (s0, n0_), (s1, n1_) in zip(sched, sched[1:]):
            if s0 <= bslot[b] <= s1: budget = n0_ + (n1_ - n0_)*(bslot[b] - s0)/(s1 - s0)
        want = n0 if b == 0 else min(len(stream), max(bpos[b] + 1 + (lamin if bslot[b] < lasw else lamin2), int(budget)))
        while nxt < want:
            it = stream[nxt]
            if it[0] == "w":
                n = wseq.index(it)
                if n >= NC and cell_free_at.get(wseq[n-NC], 99) > b-1: break
            if it[0] == "x" and it[1] == 3 and st["xdead"] > b-1: break
            issue(nxt); nxt += 1
        assert nxt > bpos[b], (b, nxt)
        log.append(nxt - bpos[b] - 1)
        if fine and b == 0:
            for q in range(min(len(stream), 13*fine)):
                while nxt < min(len(stream), q + 1 + lamin): issue(nxt); nxt += 1
                a(f"s_waitcnt vmcnt({nxt-1-q})")
                if q % fine == fine-1: a.stamp(3 + q//fine)
            a.dump_stamps(va=20)
            a("s_endpgm\nL_cpro:")
            a.dump_stamps(va=80)
            a("L_end:\ns_endpgm")
            a.write(name + ".s"); build(name + ".s", name + ".co")
            return f"{name}.co:256:512:{LDS}:4:{a.nstamps}:0"
        a(f"s_waitcnt vmcnt({nxt - bpos[b] - 1})\ns_barrier")
    assert nxt == len(stream) and not setup
    if verbose: print("lookahead", log, "bpos", bpos, len(stream))
    if entry == 3: a("s_setprio 0")
    a("; ---- stores: waves 0,1 take even tiles, waves 2,3 odd tiles" + ("; one barrier publishes a pair of staged tiles" if allbar else "; a tile is ready once no marker is left"))
    def store(i): return f"buffer_store_dwordx4 v[{32+4*i}:{35+4*i}], v{17 + i//2}, s[24:27], 0 offen offset:{(i%2)*2048} {stflags}"
    def read(i): return f"ds_read_b128 v[{32+4*i}:{35+4*i}], v16 offset:{i*32*OP}\ns_waitcnt lgkmcnt(0)"
    for i in range(4):
        r = 32 + 4*i
        if allbar or (i == 3 and lastbar == 1):
            if i in skipbar: continue
            grp = [i]
            while grp[0]-1 in skipbar: grp.insert(0, grp[0]-1)
            a("s_barrier")
            for g_ in grp:
                if OP % 16: a(f"ds_read_b64 v[{32+4*g_}:{33+4*g_}], v16 offset:{g_*32*OP}\nds_read_b64 v[{34+4*g_}:{35+4*g_}], v16 offset:{g_*32*OP+8}")
                else: a(read(g_).split("\n")[0])
            for n_, g_ in enumerate(grp): a(f"s_waitcnt lgkmcnt({len(grp)-1-n_})\n{store(g_)}")
            continue
        if i == 3:
            a(f"s_cmp_lt_u32 s31, 2\ns_cbranch_scc1 L_poll3\ns_barrier\n{read(3)}\n{store(3)}\n{'s_branch L_done' if stamps else 's_endpgm'}")
        a(f"""L_poll{i}:
        {read(i)}
        v_cmp_eq_u32 vcc, s4, v{r}
        v_cmp_eq_u32 s[6:7], s4, v{r+1}
        v_cmp_eq_u32 s[32:33], s4, v{r+2}
        v_cmp_eq_u32 s[34:35], s4, v{r+3}
        s_or_b64 vcc, vcc, s[6:7]
        s_or_b64 s[32:33], s[32:33], s[34:35]
        s_or_b64 vcc, vcc, s[32:33]
        s_cbranch_scc1 L_poll{i}
        {store(i)}""")
    if lastbar == 2: a("s_barrier")
    if stamps:
        a("L_done:"); a.stamp(1); a("s_waitcnt vmcnt(0)"); a.stamp(2)
    nl = a.nstamps
    if stamps: a("s_branch L_ldump")
    else: a("s_endpgm")
    a(".p2align 12\nL_cpro:")
    start = len(a.lines)
    PA = f"""
    v_bfe_u32 v14, v0, 4, 2
    s_bfe_u32 s3, s3, 0x20006
    v_and_b32 v12, 1, v0
    v_mul_u32_u24 v12, 1088, v12
    v_sub_u32 v12, {XB + 1088}, v12
    v_bfe_u32 v10, v0, 1, 3
    v_and_b32 v9, 2, v10
    v_xor_b32 v9, v9, v14
    v_lshl_add_u32 v9, v10, 3, v9
    v_lshl_add_u32 v2, v9, 4, v12                   ; x fragments 0..7
    v_bfe_u32 v13, v0, 2, 2
    v_lshl_add_u32 v4, v14, 3, v13
    v_lshlrev_b32 v4, 8, v4
    v_xor_b32 v13, s3, v13
    v_lshl_add_u32 v4, v13, 5, v4
    v_and_b32 v13, 19, v0
    v_lshl_add_u32 v4, v13, 3, v4
    v_xor_b32 v6, 0x80, v4                          ; g columns
    s_setprio 1
    s_waitcnt lgkmcnt(0)
    """
    PBX = f"""
    v_add_u32 v10, 1, v10
    v_and_b32 v9, 2, v10
    v_xor_b32 v9, v9, v14
    v_lshl_add_u32 v9, v10, 3, v9
    v_lshl_add_u32 v3, v9, 4, v12
    v_add_u32 v5, {12*CELL}, v4                      ; cells 12..21
    v_xor_b32 v7, 0x80, v5
    v_and_b32 v15, 15, v0
    v_mul_u32_u24 v15, {OP}, v15
    s_lshl_b32 s21, s3, 5
    s_add_u32 s21, s21, {OB}
    v_lshl_add_u32 v15, v14, 3, v15
    v_add_u32 v15, s21, v15
    s_mov_b32 s28, 0xc038aa3b                       ; -2 log2(e)
    s_mov_b32 s29, 0xbfb8aa3b                       ; -log2(e)
    s_mov_b32 s30, 0x30800000                       ; K
    s_mov_b32 s31, 0x31000000                       ; 2K
    s_cmp_eq_u32 0, 1
    """
    if split: a(PA)
    else:
        a(f"""
        v_bfe_u32 v14, v0, 4, 2
        v_and_b32 v15, 15, v0
        v_mul_u32_u24 v15, {OP}, v15
        s_lshr_b32 s21, s3, 1
        s_add_u32 s21, s21, {OB - 128}
        v_lshl_add_u32 v15, v14, 3, v15
        v_add_u32 v15, s21, v15
        """)
        if not allbar: a(f"v_mov_b32 v{SEN}, 0x40004000\nv_mov_b32 v{SEN+1}, 0x40004000")
        for jj in range(0 if allbar else 5 + lastbar): a(f"ds_write_b64 v15, v[{SEN}:{SEN+1}] offset:{jj*16*OP}")
        a(f"""
        s_bfe_u32 s3, s3, 0x20006
        v_and_b32 v12, 1, v0
        v_mul_u32_u24 v12, 1088, v12
        v_sub_u32 v12, {XB + 1088}, v12
        v_bfe_u32 v13, v0, 1, 3
        v_and_b32 v9, 2, v13
        v_xor_b32 v9, v9, v14
        v_lshl_add_u32 v9, v13, 3, v9
        v_lshl_add_u32 v2, v9, 4, v12                   ; x fragments 0..7
        v_add_u32 v13, 1, v13
        v_and_b32 v9, 2, v13
        v_xor_b32 v9, v9, v14
        v_lshl_add_u32 v9, v13, 3, v9
        v_lshl_add_u32 v3, v9, 4, v12
        v_bfe_u32 v13, v0, 2, 2
        v_lshl_add_u32 v4, v14, 3, v13
        v_lshlrev_b32 v4, 8, v4
        v_xor_b32 v13, s3, v13
        v_lshl_add_u32 v4, v13, 5, v4
        v_bfe_u32 v13, v0, 4, 1
        v_lshl_add_u32 v4, v13, 7, v4
        v_and_b32 v13, 3, v0
        v_lshl_add_u32 v4, v13, 3, v4
        v_add_u32 v5, {12*CELL}, v4
        v_xor_b32 v6, 0x80, v4                          ; g columns
        v_xor_b32 v7, 0x80, v5
        s_mov_b32 s28, 0xc038aa3b                       ; -2 log2(e)
        s_mov_b32 s29, 0xbfb8aa3b                       ; -log2(e)
        s_mov_b32 s30, 0x30800000                       ; K
        s_mov_b32 s31, 0x31000000                       ; 2K
        {"" if entry in (5, 6) else "s_setprio 1"}
        s_cmp_eq_u32 0, 1
        s_waitcnt lgkmcnt(0)
        """)
    a.lines.append("@MAIN")
    if stamps:
        for i in range(14): a.nstamps = max(a.nstamps, 14)
        a.dump_stamps(va=80)
        a("s_endpgm\nL_ldump:")
        a.nstamps = nl
        a.dump_stamps(va=20)
    a("L_end:\ns_endpgm")
    head, tail = a.lines[:a.lines.index("@MAIN")], a.lines[a.lines.index("@MAIN")+1:]
    def assemble(pad_at):
        a.lines = list(head)
        for i, l in enumerate(C):
            if l == "STAMPB": a(PBX)
            elif l.startswith("STAMP"): a.stamp(int(l[5:]))
            else: a(l)
            if i in pad_at and not jitter: a(f"L_pad{pad_at.index(i)}:\ns_cbranch_scc1 L_cpro")
        a.lines += tail
    PRO = (228 if split else 260 if allbar else 316 + 8*lastbar) - (4 if entry in (5, 6) else 0)
    nbytes, pad_at = PRO, []
    for i, l in enumerate(C):
        nbytes += 16 if l.startswith("STAMP") else 0 if l.startswith(";") else isize(l)
        q = len(pad_at)
        if q < len(pads) and nbytes >= pads[q] and l.startswith("v_mfma") and (C[i+1].startswith("v_") or (q == 0 and nbytes >= pads[q] + 32)):
            pad_at.append(i); nbytes += 4
    assert len(pad_at) == len(pads)
    if widen:
        phase, kinds = widen
        nb, cand = PRO, None
        for i, l in enumerate(C):
            if l.startswith(";"): continue
            if l.startswith(kinds) and isize(l) == 8 and nb % 8 != phase and cand is not None:
                C[cand] = re.sub(r"^(v_\w+_f32) ", r"\1_e64 ", C[cand]); nb += 4
            if l.startswith(kinds) and isize(l) == 8: cand = None
            if l.startswith("v_") and isize(l) == 4: cand = i
            nb += 16 if l.startswith("STAMP") else isize(l)
            if i in pad_at and not jitter: nb += 4
    assemble(pad_at)
    if jitter:
        out, nb = [], 0
        for l in a.lines:
            if l.strip().startswith("s_cmpk_ge_u32 s3, 256"):
                out += ["    s_lshl_b32 s99, s2, 9", "    s_add_u32 s99, s99, s3", f"    s_add_u32 s99, s99, {jitter*7919}", "    s_mul_i32 s99, s99, 0x9e3779b1", "    s_lshr_b32 s98, s99, 15", "    s_xor_b32 s99, s99, s98", "    s_mul_i32 s99, s99, 0x85ebca6b", "    s_mul_i32 s98, s99, 0xc2b2ae35", "    s_and_b32 s99, s99, s98"]
            pre = l.strip() == "s_barrier" or l.strip().startswith("ds_write_b64")
            j = [f"    s_bitcmp1_b32 s99, {nb % 32}", f"    s_cbranch_scc0 L_j{nb}", f"    s_sleep {3 + nb % 9}", f"L_j{nb}:"]
            if pre and jitter % 2: out += j; nb += 1
            out.append(l)
            if pre and not jitter % 2: out += j; nb += 1
        a.lines = out
    a.write(name + ".s")
    build(name + ".s", name + ".co")
    return f"{name}.co:256:512:{LDS}:4:{nl}:{14 if stamps else 0}"

def batch(cfgs, modes=(6,), reps=48, extra=()):
    args = list(extra); files = ["work/runner2", "work/run.sh", "work/fam.py", "work/thrash.co"] + ["work/" + e.split(":")[0] for e in extra]
    for name, kw in cfgs:
        kw = dict(kw); kw.setdefault("stamps", True)
        args.append(gen(name, **kw)); files.append(f"work/{name}.co")
    cmds = [f"BRIEF=1 ./runner2 {reps} {m} 0.1 " + " ".join(args) for m in modes]
    open("run.sh", "w").write("cd work\nrocm-smi --showuniqueid 2>/dev/null | grep 'Unique ID:' | sed 's,^,mode=,'\n" + "\n".join(cmds) + "\n")
    print(json.dumps(files))

G2 = dict(xpos=((2,)*4, (12,)*4, (12,12,24,24), (36,)*4), sched=[(70,37),(130,44),(170,53),(181,55),(230,64),(250,67)], pf3=[(24,0x7000)])
G4 = dict(G2, entry=3, n0=13)
D1 = [(j,6) for j in range(2,8)] + [(7,5)]
G5 = dict(G4, tailplan="auto", lastbar=1, gap6=(5,330), defer=D1, edelay=3)
G6 = dict(G5, allbar=4, gap6=(5,400))
G7 = dict(G6, entry=5)
G8 = dict(G7, allbar=(2,5,4))
def SW(a, b, c, e=39): return [(70,37),(85,e),(127,a),(175,b),(223,c),(240,67)]
G9 = dict(G8, nobar=(20,22,26,28,32,34), sched=SW(45,55,62))
G10 = dict(G9, sched=SW(44,55,62,38))
def SW2(a, b, c, e, n): return [(70,e-1),(85,e),(127,a),(175,b),(223,c),(240,n)]
G11 = dict(G10, pf3=[], sched=SW2(43,54,61,38,66))
G12 = dict(G11, pfrow=True, pfw=((2,0xff),))
X4 = lambda a,b,c: ((2,)*4,(a,)*4,(b,)*4,(c,)*4)
D3 = [(j,6) for j in range(2,8)] + [(7,5),(6,5)]
B3 = dict(G10, xpos=X4(12,12,30), sched=[(70,38),(85,40),(127,49),(175,57),(223,65),(230,67)], defer=D3, allbar=(3,3,3))
B3b = dict(B3, sched=[(70,38),(85,39),(127,47),(175,56),(223,64),(233,67)])
G13 = dict(G10, pflds=True)
G14 = dict(G13, xbar=((0,0),(0,1),(0,2),(0,3),(3,3)), bearly=((3,3),240), sched=[(70,37),(85,38),(127,44),(175,55),(223,62),(240,65),(250,67)])
G15 = dict(G14, allbar=(2,2,4))
FINAL0 = dict(G14, allbar=(2,2,3))
FINAL = dict(FINAL0, trim=True, widen=(0, ("v_pk",)))
FINAL1 = FINAL
FINAL2 = dict(FINAL1, xpos=X4(12,12,36), defer=D3, allbar=(3,3,3), bearly=((3,3),237),
              sched=[(70,38),(85,39),(127,46),(175,56),(223,63),(237,66),(245,67)])
if __name__ == "__main__":
    gen("final2", **dict(FINAL2, verbose=True))
```

```python
from gen5 import *
MQ = dict(markq=(0,0.5,1,1.5,2,2.5,3,3.5,4,4.05,10))
Db = [(j,6) for j in range(1,8)] + [(7,5)]
cf = []
for v in [(3,3,3),(2,3,3),(4,3,3),(6,3,3),(3,2,3),(3,4,3),(3,6,3),(3,3,2),(3,3,4),(3,3,6)]:
    cf.append((f"qa{v[0]}{v[1]}{v[2]}", dict(FINAL2, allbar=v, **MQ)))
for v in [(3,3,1),(3,3,2),(3,3,3),(3,3,4),(2,2,2)]:
    cf.append((f"qg{v[0]}{v[1]}{v[2]}", dict(FINAL2, gap6=(5,300), allbar=v, **MQ)))
for v in [(3,3,2),(3,3,3),(3,3,4),(2,2,3),(4,4,4),(2,2,5)]:
    cf.append((f"qb{v[0]}{v[1]}{v[2]}", dict(FINAL2, defer=Db, allbar=v, **MQ)))
ok = []
for n, v in cf:
    try: gen("t", **v); ok.append((n, v))
    except AssertionError as e: print("skip", n)
batch(ok, modes=(0,), reps=16)
```
